```python
import torch

def _softmax(x, axis=-1):
    return torch.softmax(x, dim=axis)
def _gelu(x):
    return torch.nn.functional.gelu(x, approximate="tanh")
def _silu(x):
    return torch.nn.functional.silu(x)
def _sigmoid(x):
    return torch.sigmoid(x)
def _layernorm(x, axis=-1, eps=1e-5):
    m = x.mean(dim=axis, keepdim=True)
    v = x.var(dim=axis, keepdim=True, unbiased=False)
    return (x - m) / torch.sqrt(v + eps)
def _scatter_add(tgt, idx, src, axis=0):
    return tgt.clone().index_add_(axis, idx, src)
def _segment_sum(src, seg, n):
    out = torch.zeros((n,) + src.shape[1:], dtype=src.dtype)
    return out.index_add_(0, seg, src)
def _pad(x, pw):
    flat = tuple(v for pair in reversed(pw) for v in pair)
    return torch.nn.functional.pad(x, flat)

kernel_name = 'concat_heads__spectral_fnet__softmax_full_mha__prompt'

def setup_inputs():

    _w = (lambda a: (lambda t: t.to(torch.bfloat16) if t.is_floating_point() else t)(torch.as_tensor(a)))
    def _A_setup():
        B, S, D = 1, 2048, 576
        ns = torch.arange(S)[:, None] * torch.arange(S)[None, :]
        nd = torch.arange(D)[:, None] * torch.arange(D)[None, :]
        Ws_re = torch.cos(-2.0 * torch.pi * ns / S).to(float)
        Ws_im = torch.sin(-2.0 * torch.pi * ns / S).to(float)
        Wd_re = torch.cos(-2.0 * torch.pi * nd / D).to(float)
        Wd_im = torch.sin(-2.0 * torch.pi * nd / D).to(float)
        return {
            "x": _w((lambda *s: torch.randn(*s, dtype=torch.bfloat16) * 0.05)(B, S, D)),
            "dft_seq_re": _w(Ws_re),
            "dft_seq_im": _w(Ws_im),
            "dft_hid_re": _w(Wd_re),
            "dft_hid_im": _w(Wd_im),
        }
    _A_in = _A_setup()

    def _B_setup():
        B, S, D = 1, 2048, 576
        return {
            "x": _w((lambda *s: torch.randn(*s, dtype=torch.bfloat16) * 0.2)(B, S, D)),
            "wqkv": _w((lambda *s: torch.randn(*s, dtype=torch.bfloat16) * 0.8)(D, 3 * D)),
            "wo": _w((lambda *s: torch.randn(*s, dtype=torch.bfloat16) * 0.2)(D, D)),
        }
    _B_in = _B_setup()

    return {
        "A_x": _A_in["x"],
        "A_dft_seq_re": _A_in["dft_seq_re"],
        "A_dft_seq_im": _A_in["dft_seq_im"],
        "A_dft_hid_re": _A_in["dft_hid_re"],
        "A_dft_hid_im": _A_in["dft_hid_im"],
        "B_x": _B_in["x"],
        "B_wqkv": _B_in["wqkv"],
        "B_wo": _B_in["wo"],
    }

def reference(A_x, A_dft_seq_re, A_dft_seq_im, A_dft_hid_re, A_dft_hid_im, B_x, B_wqkv, B_wo):
    def _A_ref(x, dft_seq_re, dft_seq_im, dft_hid_re, dft_hid_im):
        a = torch.einsum("bsd,ed->bse", x, dft_hid_re)
        b = torch.einsum("bsd,ed->bse", x, dft_hid_im)
        y = torch.einsum("ts,bse->bte", dft_seq_re, a) - torch.einsum("ts,bse->bte", dft_seq_im, b)
        return y

    def _B_ref(x, wqkv, wo):
        B, S, D = x.shape
        H = 32; Dh = D // H
        qkv = (lambda x, *d: x.permute(*d))((x @ wqkv).reshape(B, S, 3, H, Dh), 2, 0, 3, 1, 4)
        q, k, v = qkv[0], qkv[1], qkv[2]
        scale = Dh ** -0.5
        scores = torch.einsum("bhqd,bhkd->bhqk", q, k) * scale
        p = _softmax(scores, axis=-1)
        o = torch.einsum("bhqk,bhkd->bhqd", p, v)
        return (lambda x, *d: x.permute(*d))(o, 0, 2, 1, 3).reshape(B, S, D) @ wo

    a = _A_ref(A_x, A_dft_seq_re, A_dft_seq_im, A_dft_hid_re, A_dft_hid_im)
    b = _B_ref(B_x, B_wqkv, B_wo)
    return torch.concatenate([a, b], axis=-1)
```

```python
S=2048; D=576; H=32; DH=18
TILE_B=2368
KV_HEAD=64*TILE_B
WS_KV=0
WS_Q=0x4A0000
Q_HEAD=64*1152
WS_O=0x6E0000
WS_WO=0x920000
WS_SIZE=0x10000000
KA_AX=0; KA_SRE=8; KA_SIM=16; KA_HRE=24; KA_HIM=32; KA_BX=40; KA_WQKV=48; KA_WO=56; KA_OUT=64; KA_DBG=72; KA_WS=80

class Asm:
    def __init__(self): self.l=[]
    def __call__(self, s):
        for x in s.split("\n"):
            x=x.rstrip()
            if x.strip(): self.l.append(x if x.endswith(":") or x.startswith(".") else "    "+x.strip())
    def label(self, n): self.l.append(n+":")
    def text(self): return "\n".join(self.l)+"\n"

def vr(a,n): return f"v[{a}:{a+n-1}]" if n>1 else f"v{a}"
def ar(a,n): return f"a[{a}:{a+n-1}]" if n>1 else f"a{a}"
def sr(a,n): return f"s[{a}:{a+n-1}]" if n>1 else f"s{a}"

def kernel_head(name):
    return f""".text
.globl {name}
.p2align 8
.type {name},@function
{name}:
"""
def kernel_desc(name, nvgpr, nsgpr=102, accum=None):
    if accum is None: accum=(nvgpr+3)//4*4
    return f""".section .rodata,"a"
.p2align 6
.amdhsa_kernel {name}
  .amdhsa_next_free_vgpr {nvgpr}
  .amdhsa_next_free_sgpr {nsgpr}
  .amdhsa_accum_offset {accum}
  .amdhsa_group_segment_fixed_size 0
  .amdhsa_kernarg_size 88
  .amdhsa_user_sgpr_count 2
  .amdhsa_user_sgpr_kernarg_segment_ptr 1
  .amdhsa_system_sgpr_workgroup_id_x 1
.end_amdhsa_kernel
"""
def srd(a, sbase, lo, hi, size, off=0):
    if off:
        a(f"s_add_u32 s{sbase}, s{lo}, {off}")
        a(f"s_addc_u32 s{sbase+1}, s{hi}, 0")
    else:
        a(f"s_mov_b32 s{sbase}, s{lo}")
        a(f"s_mov_b32 s{sbase+1}, s{hi}")
    a(f"s_mov_b32 s{sbase+2}, {size}")
    a(f"s_mov_b32 s{sbase+3}, 0x00020000")
```

```python
import re
TRANS=("v_exp_f32","v_log_f32","v_rcp_f32","v_rsq_f32","v_sqrt_f32","v_sin_f32","v_cos_f32","v_rcp_iflag_f32","v_exp_f16","v_log_f16","v_rcp_f16")
def regs(op):
    op=op.strip()
    op=re.sub(r"^[-|]+|[|]+$","",op)
    m=re.fullmatch(r"([vsa])(\d+)",op)
    if m: return {(m.group(1),int(m.group(2)))}
    m=re.fullmatch(r"([vsa])\[(\d+):(\d+)\]",op)
    if m: return {(m.group(1),i) for i in range(int(m.group(2)),int(m.group(3))+1)}
    if op=="vcc": return {("s","vcc")}
    if op in("vcc_lo","vcc_hi"): return {("s","vcc")}
    if op=="m0": return {("s","m0")}
    if op in("exec","exec_lo","exec_hi"): return {("s","exec")}
    return set()
class I:
    def __init__(s,line):
        s.line=line
        t=line.split(";")[0].strip()
        s.label=t[:-1] if t.endswith(":") else None
        s.dirv=t.startswith(".") or not t
        s.op=""; s.w=set(); s.r=set(); s.kind=None; s.states=0
        if s.label or s.dirv: return
        p=t.split(None,1); s.op=p[0]; rest=p[1] if len(p)>1 else ""
        s.rest=rest
        ops=[x.strip() for x in re.split(r",(?![^\[]*\])",rest)]
        mods=""
        if ops:
            q=ops[-1].split(None,1); ops[-1]=q[0] if q else ""; mods=q[1] if len(q)>1 else ""
        s.mods=mods; s.ops=ops; s.states=1
        op=s.op
        if op=="s_nop": s.states=int(ops[0],0)+1; s.kind="nop"; return
        if op.startswith(("v_mfma","v_smfmac")):
            s.kind="mfma"; s.w=regs(ops[0]); s.A=regs(ops[1]); s.B=regs(ops[2])
            if op.startswith("v_smfmac"): s.C=regs(ops[0]); s.AB=s.A|s.B|regs(ops[3])
            else: s.C=regs(ops[3]); s.AB=s.A|s.B
            s.r=s.AB|s.C
            s.passes=8 if "32x32" in op else 4
            return
        if op.startswith("v_"):
            s.kind="valu"
            if op.startswith("v_cmpx"): s.w={("s","exec")}; src=ops if len(ops)==2 else ops[1:]
            elif op.startswith("v_permlane") and "swap" in op: s.w=regs(ops[0])|regs(ops[1]); src=ops
            elif re.match(r"v_(add|sub|subrev|addc|subb|subbrev)_co_",op) or op.startswith("v_div_scale") or op.startswith("v_mad_u64") :
                s.w=regs(ops[0])|regs(ops[1]); src=ops[2:]
            else: s.w=regs(ops[0]); src=ops[1:]
            for o in src: s.r|=regs(o)
            if op.startswith("v_cndmask") and len(ops)==3: s.r|={("s","vcc")}
            if op.startswith(("v_fmac","v_mac","v_pk_fmac","v_dot2c","v_writelane")) or "op_sel" in mods or "sdwa" in op or "dst_sel" in mods: s.r|=regs(ops[0])
            return
        if op.startswith(("buffer_","global_","flat_")):
            s.kind="vmem"
            s.lds=" lds" in (" "+mods)
            if "store" in op or ("atomic" in op):
                for o in ops: s.r|=regs(o)
                s.sdata=regs(ops[0]) if op.startswith("buffer") else regs(ops[1])
                if "atomic" in op and ("sc0" in mods): s.w=regs(ops[0])
                s.wide=("x3" in op or "x4" in op)
            elif s.lds or "load_lds" in op:
                s.lds=True
                for o in ops: s.r|=regs(o)
            else:
                s.w=regs(ops[0])
                for o in ops[1:]: s.r|=regs(o)
            return
        if op.startswith("ds_"):
            s.kind="ds"
            if op.startswith(("ds_read","ds_bpermute","ds_permute","ds_swizzle")) or "_rtn" in op:
                s.w=regs(ops[0])
                for o in ops[1:]: s.r|=regs(o)
            else:
                for o in ops: s.r|=regs(o)
            return
        if op.startswith("s_"):
            s.kind="salu"
            if op.startswith(("s_cmp","s_cbranch","s_branch","s_waitcnt","s_barrier","s_endpgm","s_setprio","s_sleep","s_bitcmp")):
                for o in ops: s.r|=regs(o)
            else:
                s.w=regs(ops[0])
                for o in ops[1:]: s.r|=regs(o)
                if "saveexec" in op: s.w|={("s","exec")}
            return
        raise ValueError(line)
def need(p,c):
    n=0
    pv={x for x in p.w if x[0] in "va"}; ps={x for x in p.w if x[0]=="s"}
    if p.kind=="valu":
        if c.kind=="valu" and ps&c.r: n=max(n,4 if c.op.startswith(("v_readlane","v_writelane")) else 2)
        if c.kind=="vmem" and ps&c.r: n=max(n,5)
        if c.kind=="valu" and c.op.startswith(("v_readlane","v_readfirstlane")) and pv&c.r: n=max(n,1)
        if c.kind=="valu" and (c.op.startswith("v_permlane") or "dpp" in c.op or "row_" in c.mods or "quad_perm" in c.mods) and pv&c.r: n=max(n,2)
        if p.op.startswith(TRANS) and c.kind=="valu" and not c.op.startswith(TRANS) and pv&c.r: n=max(n,1)
        if ("op_sel" in p.mods or "dst_sel" in p.mods) and c.kind=="valu" and pv&(c.r|c.w): n=max(n,1)
        if c.kind=="mfma" and pv&c.r: n=max(n,2)
        if ("s","exec") in p.w and c.kind=="mfma": n=max(n,4)
        if ("s","exec") in p.w and c.kind=="valu" and c.op.startswith(("v_readlane","v_readfirstlane","v_writelane","v_permlane")): n=max(n,4)
    if p.kind=="salu" and ("s","m0") in p.w:
        if (c.kind=="vmem" and c.lds) or c.op.startswith("s_movrel") or "addtid" in c.op: n=max(n,1)
    if p.kind=="vmem" and getattr(p,"wide",False) and c.kind in("valu","mfma") and p.sdata&c.w: n=max(n,2)
    if p.kind=="mfma":
        P=p.passes
        if c.kind=="mfma":
            if p.w&c.C and not (p.w==c.C and p.passes==c.passes): n=max(n,{4:6,8:10}[P])
            if p.w&c.AB: n=max(n,{4:8,8:12}[P])
            if p.w&c.w and not (p.w&c.C): n=max(n,0)
        elif c.kind in("valu","vmem","ds") and p.w&(c.r|c.w): n=max(n,{4:8,8:12}[P])
        if c.kind=="valu" and p.C&c.w: n=max(n,{4:3,8:7}[P])
    return n
def analyse(lines, pad=False, quiet=False):
    out=[]; ins=[I(l) for l in lines]
    labels={x.label:i for i,x in enumerate(ins) if x.label}
    real=[i for i,x in enumerate(ins) if x.kind]
    jumps={}
    for i,x in enumerate(ins):
        if x.op.startswith(("s_cbranch","s_branch")):
            jumps.setdefault(labels.get(x.ops[0]),[]).append(i)
    probs=[]
    extra={}
    def walk(c, j, dist, seen, linear):
        worst=0
        while j>=0 and dist<20:
            x=ins[j]
            if x.label and j in jumps:
                for src in jumps[j]:
                    if (src,dist) not in seen:
                        seen.add((src,dist))
                        w=walk(c, src-1+0, dist+1+extra.get(src,0), seen, False)
                        worst=max(worst,w)
            if x.kind:
                if x.op in("s_branch","s_endpgm"): return worst
                n=need(x,c)
                if n>dist:
                    worst=max(worst,n-dist)
                    if not quiet: probs.append((x.line.strip(), c.line.strip(), n, dist, linear))
                dist+=x.states+extra.get(j,0)
            j-=1
        return worst
    for i,x in enumerate(ins):
        if not x.kind or x.kind=="nop":
            continue
        w=walk(x,i-1,0,set(),True)
        if w and pad: extra[i]=w
    if pad:
        for i,x in enumerate(ins):
            if i in extra: out.append(f"    s_nop {extra[i]-1}")
            out.append(x.line)
        return out,probs
    return lines,probs
def autopad(text, verbose=True):
    lines=text.split("\n")
    out,probs=analyse(lines,pad=True)
    if verbose:
        for p in probs: print("PAD", p)
    _,p2=analyse(out)
    assert not p2, p2
    return "\n".join(out)
```

```python
from common import *
SHIFT=80.0
def gen_k2(name="attn_kernel", unroll=4, stamps=False, var=""):
    a=Asm()
    NB=64//unroll
    vLane=1; vT0=2; vT1=3
    Q1=4; Q2=8
    K1=12; K2=10
    V0=16; V1=20
    aK1=24; aK2=25; aV=26; vIdx=27
    vM=28; vT2=29; vT3=30; vT4=31
    SA=32; SB=48; O=64
    NV=96
    a(f"""s_cmp_ge_u32 s2, 256
s_cbranch_scc1 L_k2_end
s_load_dwordx2 s[4:5], s[0:1], {KA_WS}
s_load_dwordx2 s[6:7], s[0:1], {KA_DBG}
v_lshrrev_b32 v{vT0}, 6, v0
v_and_b32 v{vLane}, 63, v0
s_and_b32 s3, s2, 7
s_lshr_b32 s20, s2, 3          ; j
s_lshl_b32 s3, s3, 2
s_lshr_b32 s21, s20, 3
s_add_u32 s21, s21, s3          ; head
s_and_b32 s22, s20, 7           ; qblk
v_readfirstlane_b32 s23, v{vT0}   ; wave
s_waitcnt lgkmcnt(0)""")
    if stamps: a("s_memtime s[40:41]")
    srd(a, 8, 4, 5, WS_SIZE)
    a(f"""s_cmp_ge_u32 s23, 8
s_cbranch_scc1 L_k2_helper""")
    a(f"""s_mul_i32 s24, s21, {Q_HEAD}
s_lshl_b32 s25, s22, 3
s_add_u32 s25, s25, s23          ; qtile
s_mul_i32 s26, s25, 1152
s_add_u32 s24, s24, s26
s_add_u32 s24, s24, {WS_Q}
v_lshlrev_b32 v{aK1}, 4, v{vLane}
v_and_b32 v{vT1}, 31, v{vLane}
v_lshlrev_b32 v{vT2}, 2, v{vT1}
buffer_load_dwordx4 {vr(Q1,4)}, v{aK1}, s[8:11], s24 offen
buffer_load_dword v{Q2}, v{vT2}, s[8:11], s24 offen offset:1024
v_add_u32 v{aK2}, 2240, v{vT2}
v_mov_b32 v{K2+1}, 0x3f803f80
v_mov_b32 v{vIdx}, 0xdddd
v_mov_b32 v{Q2+1}, 0""")
    a(f"""v_min_u32 v{vT2}, 18, v{vT1}
v_and_b32 v{vT3}, 3, v{vT1}
v_cmp_lt_u32 vcc, 19, v{vT1}
v_subrev_u32 v{vT4}, 24, v{vT1}
v_cndmask_b32 v{vT2}, v{vT2}, v{vT3}, vcc
v_cmp_lt_u32 vcc, 27, v{vT1}
v_lshrrev_b32 v{vT3}, 5, v{vLane}
v_mul_u32_u24 v{vT3}, 19, v{vT3}
v_cndmask_b32 v{vT2}, v{vT2}, v{vT4}, vcc
v_add_u32 v{vT2}, v{vT2}, v{vT3}
v_lshlrev_b32 v{vT2}, 4, v{vT2}
v_add_u32 v{aV}, 1024, v{vT2}""")
    for i in range(16): a(f"v_mov_b32 v{O+i}, 0")
    a(f"""v_cmp_gt_u32 vcc, 32, v{vLane}
s_waitcnt vmcnt(0)
v_cndmask_b32 v{Q2}, 0, v{Q2}, vcc
s_barrier""")
    def LK1(t): return f"ds_read_b128 {vr(K1,4)}, v{aK1} offset:{t*TILE_B}"
    def LK2(t): return f"ds_read_b32 v{K2}, v{aK2} offset:{t*TILE_B}"
    def LV0(t): return f"ds_read_b128 {vr(V0,4)}, v{aV} offset:{t*TILE_B}"
    def LV1(t): return f"ds_read_b128 {vr(V1,4)}, v{aV} offset:{t*TILE_B+608}"
    def MA(Sx): return f"v_mfma_f32_32x32x8_bf16 {vr(Sx,16)}, {vr(K2,2)}, {vr(Q2,2)}, 0"
    def MB(Sx): return f"v_mfma_f32_32x32x16_bf16 {vr(Sx,16)}, {vr(K1,4)}, {vr(Q1,4)}, {vr(Sx,16)}"
    def MC(Sx): return f"v_smfmac_f32_32x32x32_bf16 {vr(O,16)}, {vr(V0,4)}, {vr(Sx,8)}, v{vIdx}"
    def MD(Sx): return f"v_smfmac_f32_32x32x32_bf16 {vr(O,16)}, {vr(V1,4)}, {vr(Sx+8,8)}, v{vIdx}"
    def E(Sx,j): return f"v_exp_f32 v{Sx+j}, v{Sx+j}"
    W3="s_waitcnt lgkmcnt(3)"
    NOP="s_nop 1"
    if "nowait" in var: W3=""
    if "nonop" in var: NOP=""
    a(LK2(0)); a(LK1(0))
    a("s_waitcnt lgkmcnt(0)")
    a(MA(SA)); a(MB(SA))
    a("s_nop 15")
    a(f"v_max3_f32 v{vM}, v{SA}, v{SA+1}, v{SA+2}")
    for j in range(3,15,2): a(f"v_max3_f32 v{vM}, v{vM}, v{SA+j}, v{SA+j+1}")
    a(f"""v_max_f32 v{vM}, v{vM}, v{SA+15}
v_mov_b32 v{vT2}, v{vM}
s_nop 1
v_permlane32_swap_b32 v{vM}, v{vT2}
s_nop 1
v_max_f32 v{vM}, v{vM}, v{vT2}
v_add_f32 v{vM}, {SHIFT!r}, v{vM}
v_sub_f32 v{vM}, 0, v{vM}
v_lshrrev_b32 v{vM}, 16, v{vM}
v_cmp_gt_u32 vcc, 32, v{vLane}
s_nop 1
v_cndmask_b32 v{Q2+1}, 0, v{vM}, vcc
s_nop 1""")
    a(MA(SA)); a(MB(SA))
    for j in range(8,16): a(f"v_mov_b32 v{SB+j}, 0")
    a(LV1(0)); a(LK2(1)); a(LK1(1)); a(LV0(0))
    a(f"s_mov_b32 s27, 0")
    a(f"s_mov_b32 s29, 0x0d800000   ; 2^-100")
    prio=PRIO[unroll] if "prio" in var else []
    a(f"s_mov_b32 s28, {BAR_MASK[unroll] | sum(1<<b for b in prio)}")
    if prio: a("s_setprio 3")
    if stamps: a("s_memtime s[46:47]\ns_waitcnt lgkmcnt(0)")
    a("s_nop 7")
    a(".p2align 6")
    a.label("L_k2_loop")
    if "nods" in var:
        sv=(LK1,LK2,LV0,LV1)
        LK1=LK2=LV0=LV1=lambda t: ""
    if "notinplace" in var:
        def E(Sx,j): return f"v_exp_f32 v{80+j}, v{Sx+j}"
    for u in range(unroll):
        Sc,Sn=(SA,SB) if u%2==0 else (SB,SA)
        a(E(Sc,0)); a(E(Sc,1))
        a(W3)
        a(MD(Sn)); a(LV1(u))
        for j in range(2,6): a(E(Sc,j))
        a(W3)
        a(MA(Sn)); a(LK2(u+2))
        for j in range(6,10): a(E(Sc,j))
        a(W3)
        a(MB(Sn)); a(LK1(u+2))
        for j in range(10,14): a(E(Sc,j))
        a(W3)
        a(MC(Sc)); a(LV0(u+1))
        a(E(Sc,14)); a(E(Sc,15))
        if u==unroll-1:
            a(f"""v_add_u32 v{aK1}, {unroll*TILE_B}, v{aK1}
v_add_u32 v{aK2}, {unroll*TILE_B}, v{aK2}
v_add_u32 v{aV}, {unroll*TILE_B}, v{aV}
s_add_u32 s27, s27, 1
{'s_memtime s[48:49]'+chr(10)+'s_mov_b32 m0, s27'+chr(10)+'s_waitcnt lgkmcnt(0)'+chr(10)+'s_movreld_b32 s63, s48' if 'bst' in var else ''}
s_bitcmp1_b32 s28, s27
s_cbranch_scc1 L_k2_event""")
            a.label("L_k2_nobar")
            a(f"""s_cmp_lt_u32 s27, {NB}
s_cbranch_scc1 L_k2_loop""")
        else:
            a(NOP)
    if "nods" in var: LK1,LK2,LV0,LV1=sv
    a("s_waitcnt lgkmcnt(0)")
    a(MD(SB))
    a("s_nop 15")
    if stamps: a("s_memtime s[42:43]")
    a.label("L_k2_finish")
    a(f"""v_mov_b32 v{vM}, v{O+10}
v_mov_b32 v{vT2}, v{O+10}
v_mul_f32 v{vT3}, 0, v{O}
s_nop 0
v_permlane32_swap_b32 v{vM}, v{vT2}""")
    for i in range(1,8): a(f"v_fma_f32 v{vT3}, v{O+i}, 0, v{vT3}")
    a(f"""v_cmp_gt_u32 vcc, 32, v{vLane}
v_fma_f32 v{vT3}, v{vM}, 0, v{vT3}
v_cndmask_b32 v{O+8}, 0, v{O+8}, vcc
v_cndmask_b32 v{O+9}, 0, v{O+9}, vcc
v_fma_f32 v{vT3}, v{O+8}, 0, v{vT3}
v_fma_f32 v{vT3}, v{O+9}, 0, v{vT3}
v_cmp_nle_f32 s[32:33], s29, v{vM}
v_rcp_f32 v{vM}, v{vM}
v_cmp_u_f32 vcc, v{vT3}, v{vT3}
s_nop 1
s_or_b64 s[30:31], vcc, s[32:33]
s_cmp_lg_u32 s27, 0xffff
s_cselect_b64 s[30:31], s[30:31], 0
s_cmp_lg_u64 s[30:31], 0
s_cbranch_scc1 L_k2_fallback""")
    for i in range(10): a(f"v_mul_f32 v{O+i}, v{O+i}, v{vM}")
    for i in range(5): a(f"v_cvt_pk_bf16_f32 v{SA+i}, v{O+2*i}, v{O+2*i+1}")
    a(f"""s_lshr_b32 s32, s21, 1
s_mul_i32 s32, s32, 36
s_and_b32 s33, s21, 1
s_lshl_b32 s34, s33, 4
s_add_u32 s34, s34, s32          ; base
s_lshl_b32 s35, s33, 1
s_add_u32 s35, s35, s32
s_add_u32 s35, s35, 32           ; leftover c'
s_mul_i32 s36, s25, {2*18*1024}
s_add_u32 s36, s36, {WS_O}
v_bfe_u32 v{vT2}, v{vLane}, 4, 1
v_mul_u32_u24 v{vT2}, {18*1024}, v{vT2}
v_and_b32 v{vT3}, 15, v{vLane}
v_lshl_add_u32 v{vT2}, v{vT3}, 4, v{vT2}
v_lshrrev_b32 v{vT3}, 5, v{vLane}
v_lshlrev_b32 v{vT3}, 2, v{vT3}""")
    def caddr(dst, c):
        a(f"""v_lshrrev_b32 v{dst}, 3, v{c}
v_lshl_add_u32 v{dst}, v{dst}, 8, v{vT2}
v_and_b32 v{c}, 7, v{c}
v_lshl_add_u32 v{dst}, v{c}, 1, v{dst}""")
    a(f"v_add_u32 v{vT4}, s34, v{vT3}")
    a(f"v_add_u32 v{K1+1}, 8, v{vT4}")
    caddr(K1, vT4)
    a(f"buffer_store_dwordx2 {vr(SA,2)}, v{K1}, s[8:11], s36 offen")
    caddr(K1+2, K1+1)
    a(f"buffer_store_dwordx2 {vr(SA+2,2)}, v{K1+2}, s[8:11], s36 offen")
    a(f"v_mov_b32 v{vT4}, s35")
    caddr(K1+3, vT4)
    a(f"""v_cmp_gt_u32 vcc, 32, v{vLane}
s_and_saveexec_b64 s[30:31], vcc
buffer_store_dword v{SA+4}, v{K1+3}, s[8:11], s36 offen""")
    if stamps:
        a(f"""s_waitcnt vmcnt(0)
s_memtime s[44:45]
s_waitcnt lgkmcnt(0)
s_mov_b32 s12, s4
s_mov_b32 s13, s5
s_mov_b32 s14, {WS_SIZE}
s_mov_b32 s15, 0x00020000
s_mul_i32 s37, s2, 12
s_add_u32 s37, s37, s23
s_lshl_b32 s37, s37, 4
s_add_u32 s37, s37, 0x4000000
v_mov_b32 v4, s40
v_mov_b32 v5, s42
v_mov_b32 v6, s44
v_mov_b32 v7, s46
v_mov_b32 v8, 0
buffer_store_dwordx4 v[4:7], v8, s[12:15], s37 offen""")
        if "bst" in var:
            a("s_mul_i32 s37, s2, 12\ns_add_u32 s37, s37, s23\ns_lshl_b32 s37, s37, 7\ns_add_u32 s37, s37, 0x5000000")
            for i in range(min(NB,32)):
                a(f"v_mov_b32 v4, s{64+i}\nbuffer_store_dword v4, v8, s[12:15], s37 offen offset:{4*i}\ns_nop 1")
    a("s_endpgm")
    a.label("L_k2_event")
    for i,b in enumerate(prio):
        a(f"s_cmp_lg_u32 s27, {b}\ns_cbranch_scc1 L_k2_ev{i}\ns_setprio {2-i}")
        a.label(f"L_k2_ev{i}")
    a(f"s_mov_b32 s30, {BAR_MASK[unroll]}\ns_bitcmp1_b32 s30, s27\ns_cbranch_scc0 L_k2_nobar\ns_barrier\ns_branch L_k2_nobar")
    a.label("L_k2_fallback")
    a(f"""v_subrev_u32 v{aK1}, {64*TILE_B}, v{aK1}
v_subrev_u32 v{aK2}, {64*TILE_B}, v{aK2}
v_subrev_u32 v{aV}, {64*TILE_B}, v{aV}
v_mov_b32 v{Q2+1}, 0
v_mov_b32 v{vM}, 0xff800000
s_mov_b32 s27, 0""")
    a.label("L_k2_fb1")
    a(LK2(0)); a(LK1(0))
    a(f"""v_add_u32 v{aK1}, {TILE_B}, v{aK1}
v_add_u32 v{aK2}, {TILE_B}, v{aK2}
s_waitcnt lgkmcnt(0)""")
    a(MA(SA)); a(MB(SA)); a("s_nop 15")
    for j in range(0,16,2): a(f"v_max3_f32 v{vM}, v{vM}, v{SA+j}, v{SA+j+1}")
    a(f"""s_add_u32 s27, s27, 1
s_cmp_lt_u32 s27, 64
s_cbranch_scc1 L_k2_fb1
v_mov_b32 v{vT2}, v{vM}
v_subrev_u32 v{aK1}, {64*TILE_B}, v{aK1}
v_subrev_u32 v{aK2}, {64*TILE_B}, v{aK2}
v_permlane32_swap_b32 v{vM}, v{vT2}
s_mov_b32 s27, 0
s_nop 1
v_max_f32 v{vM}, v{vM}, v{vT2}""")
    for i in range(16): a(f"v_mov_b32 v{O+i}, 0")
    a.label("L_k2_fb2")
    a(LK2(0)); a(LK1(0)); a(LV0(0)); a(LV1(0))
    a(f"""v_add_u32 v{aK1}, {TILE_B}, v{aK1}
v_add_u32 v{aK2}, {TILE_B}, v{aK2}
v_add_u32 v{aV}, {TILE_B}, v{aV}
s_waitcnt lgkmcnt(0)""")
    a(MA(SA)); a(MB(SA)); a("s_nop 15")
    for j in range(16): a(f"v_sub_f32 v{SA+j}, v{SA+j}, v{vM}")
    for j in range(16): a(E(SA,j))
    a("s_nop 2")
    a(MC(SA)); a(MD(SA))
    a(f"""s_add_u32 s27, s27, 1
s_cmp_lt_u32 s27, 64
s_cbranch_scc1 L_k2_fb2
s_mov_b32 s27, 0xffff
s_nop 15
s_branch L_k2_finish""")
    a.label("L_k2_helper")
    a(f"""s_sub_u32 s23, s23, 8
s_mul_i32 s24, s21, {KV_HEAD}
s_lshl_b32 s25, s23, 10
s_add_u32 s24, s24, s25
s_add_u32 s24, s24, {WS_KV}
v_lshlrev_b32 v{vT0}, 4, v{vLane}""")
    issued=0
    AHEAD=int([x for x in var.split(",") if x.startswith("ah")][0][2:]) if "ah" in var else 8
    def issue(n):
        nonlocal issued
        while issued<min(n,37):
            a(f"""s_mov_b32 m0, s25
s_add_u32 s25, s25, 4096
buffer_load_dwordx4 v{vT0}, s[8:11], s24 offen lds
s_add_u32 s24, s24, 4096""")
            issued+=1
    for lim in PHASES[unroll]:
        nkb=(lim*TILE_B+1023)//1024
        need=min((nkb+3)//4,37)
        issue(need+AHEAD)
        a(f"s_waitcnt vmcnt({issued-need})")
        a("s_barrier")
    a.label("L_k2_end")
    a("s_endpgm")
    return kernel_head(name)+a.text()+kernel_desc(name, NV, 100)

BAR_MASK={2:(1<<2)|(1<<6)|(1<<14), 4:(1<<1)|(1<<3)|(1<<7), 8:(1<<1)|(1<<3), 16:(1<<1)}
PRIO={2:[16,26,30], 4:[8,13,15], 8:[4,6,7], 16:[1,2,3]}
PHASES={2:[6,14,30,64], 4:[6,14,30,64], 8:[10,26,64], 16:[18,64]}
```

```python
from common import *
WS_WT=0xA00000
WS_AT=0xC00000
WS_BT=0xE80000
C_SCALE = DH**-0.5 * 1.4426950408889634
import struct
def f2u(x): return struct.unpack("<I", struct.pack("<f", x))[0]

def gen_prep(name="prep_kernel"):
    a=Asm()
    a(f"""s_cmp_ge_u32 s2, 648
s_cbranch_scc1 L_p_end
s_load_dwordx2 s[4:5], s[0:1], {KA_WS}
s_load_dwordx2 s[6:7], s[0:1], {KA_WQKV}
s_load_dwordx2 s[16:17], s[0:1], {KA_WO}
s_waitcnt lgkmcnt(0)""")
    srd(a,8,4,5,WS_SIZE)
    a("s_cmp_ge_u32 s2, 486\ns_cbranch_scc1 L_p_wo")
    srd(a,12,6,7,576*1728*2)
    a(f"""s_lshl_b32 s3, s2, 8
v_add_u32 v1, s3, v0
v_cvt_f32_u32 v2, v1
v_add_f32 v2, 0.5, v2
v_mul_f32 v2, {1.0/1728!r}, v2
v_cvt_u32_f32 v2, v2              ; kg
v_mul_u32_u24 v3, 1728, v2
v_sub_u32 v3, v1, v3              ; n
v_mul_u32_u24 v4, {8*3456}, v2
v_lshl_add_u32 v4, v3, 1, v4      ; src
v_mul_u32_u24 v5, 1152, v3
v_lshl_add_u32 v5, v2, 4, v5      ; dst
s_mov_b32 s20, 0""")
    for j in range(8):
        a(f"buffer_load_ushort v{8+j}, v4, s[12:15], s20 offen\ns_add_u32 s20, s20, 3456")
    a("s_waitcnt vmcnt(0)")
    for j in range(4): a(f"v_lshl_or_b32 v{8+j}, v{9+2*j}, 16, v{8+2*j}")
    a(f"s_mov_b32 s21, {WS_WT}\nbuffer_store_dwordx4 v[8:11], v5, s[8:11], s21 offen\ns_endpgm")
    a.label("L_p_wo")
    srd(a,12,16,17,576*576*2)
    a(f"""s_sub_u32 s3, s2, 486
s_lshl_b32 s3, s3, 8
v_add_u32 v1, s3, v0
v_and_b32 v2, 15, v1              ; nl
v_lshrrev_b32 v3, 4, v1
v_cvt_f32_u32 v4, v3
v_add_f32 v4, 0.5, v4
v_mul_f32 v4, {1.0/72!r}, v4
v_cvt_u32_f32 v4, v4              ; n16
v_mul_u32_u24 v5, 72, v4
v_sub_u32 v5, v3, v5              ; cg
v_lshl_add_u32 v2, v4, 4, v2      ; n
v_lshlrev_b32 v5, 3, v5           ; c'0""")
    for j in range(8):
        a(f"""v_add_u32 v6, {j}, v5
v_cvt_f32_u32 v7, v6
v_add_f32 v7, 0.5, v7
v_mul_f32 v7, {1.0/36!r}, v7
v_cvt_u32_f32 v7, v7
v_mul_u32_u24 v7, 36, v7
v_sub_u32 v6, v6, v7              ; r
v_add_u32 v20, 2, v6
v_cmp_lt_u32 vcc, 15, v6
v_subrev_u32 v21, 16, v6
v_cndmask_b32 v20, v6, v20, vcc
v_cmp_lt_u32 vcc, 31, v6
s_nop 1
v_cndmask_b32 v20, v20, v21, vcc
v_cmp_lt_u32 vcc, 33, v6
s_nop 1
v_cndmask_b32 v20, v20, v6, vcc
v_add_u32 v20, v20, v7
v_mul_u32_u24 v20, 1152, v20
v_lshl_add_u32 v20, v2, 1, v20
buffer_load_ushort v{8+j}, v20, s[12:15], 0 offen""")
    a("s_waitcnt vmcnt(0)")
    for j in range(4): a(f"v_lshl_or_b32 v{8+j}, v{9+2*j}, 16, v{8+2*j}")
    a(f"v_lshlrev_b32 v1, 4, v1\ns_mov_b32 s21, {WS_WO}\nbuffer_store_dwordx4 v[8:11], v1, s[8:11], s21 offen")
    a.label("L_p_end")
    a("s_endpgm")
    return kernel_head(name)+a.text()+kernel_desc(name,32,32)

def nt_loop(a, tag, nsteps, vA, vB, srdA, srdB, sA, sB, acc, t0=8):
    a(f"s_mov_b32 s40, {nsteps//4}")
    a.label(f"L_{tag}")
    for u in range(4):
        a(f"buffer_load_dwordx4 {vr(t0+8*u,4)}, v{vA}, {sr(srdA,4)}, s{sA} offen offset:{32*u}")
        a(f"buffer_load_dwordx4 {vr(t0+8*u+4,4)}, v{vB}, {sr(srdB,4)}, s{sB} offen offset:{32*u}")
    for u in range(4):
        a(f"s_waitcnt vmcnt({6-2*u})")
        a(f"v_mfma_f32_32x32x16_bf16 {vr(acc,16)}, {vr(t0+8*u,4)}, {vr(t0+8*u+4,4)}, {vr(acc,16)}")
    a(f"""s_add_u32 s{sA}, s{sA}, 128
s_add_u32 s{sB}, s{sB}, 128
s_sub_u32 s40, s40, 1
s_nop 7
s_cmp_lg_u32 s40, 0
s_cbranch_scc1 L_{tag}
s_nop 15""")

def wave_tile_prologue(a, ntiles, end):
    a(f"""v_lshrrev_b32 v1, 6, v0
s_lshl_b32 s3, s2, 2
v_readfirstlane_b32 s22, v1
v_and_b32 v1, 63, v0
v_and_b32 v2, 31, v1
v_lshrrev_b32 v3, 5, v1
s_add_u32 s3, s3, s22
s_cmp_ge_u32 s3, {ntiles}
s_cbranch_scc1 {end}""")

def gen_f1(name="f1_kernel"):
    a=Asm(); ACC=48
    wave_tile_prologue(a, 2*64*18, "L_f1_end")
    a(f"""s_load_dwordx2 s[4:5], s[0:1], {KA_WS}
s_load_dwordx2 s[6:7], s[0:1], {KA_AX}
s_load_dwordx4 s[24:27], s[0:1], {KA_HRE}
s_and_b32 s30, s3, 1               ; im?
s_lshr_b32 s31, s3, 1
s_and_b32 s32, s31, 63             ; s tile
s_lshr_b32 s33, s31, 6             ; e tile
s_waitcnt lgkmcnt(0)
s_cmp_eq_u32 s30, 1
s_cselect_b32 s24, s26, s24
s_cselect_b32 s25, s27, s25""")
    srd(a,8,4,5,WS_SIZE); srd(a,12,6,7,S*D*2); srd(a,16,24,25,D*D*2)
    a(f"""v_mul_u32_u24 v4, 1152, v2
v_lshl_add_u32 v4, v3, 4, v4
s_mul_i32 s34, s32, {32*1152}
s_mul_i32 s35, s33, {32*1152}""")
    for i in range(16): a(f"v_mov_b32 v{ACC+i}, 0")
    nt_loop(a,"f1",36,4,4,12,16,34,35,ACC)
    a(f"""s_cmp_eq_u32 s30, 1
s_cselect_b32 s36, 0xbf800000, 1.0
s_mov_b32 s37, {WS_AT}
s_cselect_b32 s37, {WS_BT}, s37
s_mul_i32 s38, s33, {32*4096}
s_add_u32 s37, s37, s38
s_lshl_b32 s38, s32, 6
s_add_u32 s37, s37, s38
v_lshlrev_b32 v5, 12, v2
v_lshl_add_u32 v5, v3, 3, v5""")
    for i in range(16): a(f"v_mul_f32 v{ACC+i}, s36, v{ACC+i}")
    for i in range(8): a(f"v_cvt_pk_bf16_f32 v{8+i}, v{ACC+2*i}, v{ACC+2*i+1}")
    for g in range(4): a(f"buffer_store_dwordx2 {vr(8+2*g,2)}, v5, s[8:11], s37 offen offset:{16*g}")
    a.label("L_f1_end"); a("s_endpgm")
    return kernel_head(name)+a.text()+kernel_desc(name,64,48)

def gen_f2(name="f2_kernel"):
    a=Asm(); ACC=48
    wave_tile_prologue(a, 64*18, "L_f2_end")
    a(f"""s_load_dwordx2 s[4:5], s[0:1], {KA_WS}
s_load_dwordx4 s[24:27], s[0:1], {KA_SRE}
s_load_dwordx2 s[6:7], s[0:1], {KA_OUT}
s_and_b32 s32, s3, 63             ; t tile
s_lshr_b32 s33, s3, 6             ; e tile
s_waitcnt lgkmcnt(0)""")
    srd(a,8,4,5,WS_SIZE); srd(a,12,24,25,S*S*2); srd(a,16,26,27,S*S*2); srd(a,44,6,7,S*1152*2)
    a(f"""v_lshlrev_b32 v4, 12, v2
v_lshl_add_u32 v4, v3, 4, v4
s_mul_i32 s34, s33, {32*4096}
s_add_u32 s34, s34, {WS_AT}
s_mul_i32 s35, s32, {32*4096}""")
    for i in range(16): a(f"v_mov_b32 v{ACC+i}, 0")
    nt_loop(a,"f2a",128,4,4,8,12,34,35,ACC)
    a(f"""s_mul_i32 s34, s33, {32*4096}
s_add_u32 s34, s34, {WS_BT}
s_mul_i32 s35, s32, {32*4096}""")
    nt_loop(a,"f2b",128,4,4,8,16,34,35,ACC)
    a(f"""s_mul_i32 s37, s32, {32*2304}
s_lshl_b32 s38, s33, 6
s_add_u32 s37, s37, s38
v_mul_u32_u24 v5, 2304, v2
v_lshl_add_u32 v5, v3, 3, v5""")
    for i in range(8): a(f"v_cvt_pk_bf16_f32 v{8+i}, v{ACC+2*i}, v{ACC+2*i+1}")
    for g in range(4): a(f"buffer_store_dwordx2 {vr(8+2*g,2)}, v5, s[44:47], s37 offen offset:{16*g}")
    a.label("L_f2_end"); a("s_endpgm")
    return kernel_head(name)+a.text()+kernel_desc(name,64,64)

def gen_qkv(name="qkv_kernel"):
    a=Asm(); ACC=48
    wave_tile_prologue(a, 54*64, "L_q_end")
    a(f"""s_load_dwordx2 s[4:5], s[0:1], {KA_WS}
s_load_dwordx2 s[6:7], s[0:1], {KA_BX}
s_and_b32 s32, s3, 63
s_lshr_b32 s33, s3, 6
s_waitcnt lgkmcnt(0)""")
    srd(a,8,4,5,WS_SIZE); srd(a,12,6,7,S*D*2)
    a(f"""v_mul_u32_u24 v4, 1152, v2
v_lshl_add_u32 v4, v3, 4, v4
s_mul_i32 s34, s32, {32*1152}
s_mul_i32 s35, s33, {32*1152}
s_add_u32 s35, s35, {WS_WT}""")
    for i in range(16): a(f"v_mov_b32 v{ACC+i}, 0")
    a("s_cmp_ge_u32 s33, 36\ns_cbranch_scc1 L_q_v")
    nt_loop(a,"qk",36,4,4,8,12,35,34,ACC)
    for i in range(8): a(f"v_cvt_pk_bf16_f32 v{8+i}, v{ACC+2*i}, v{ACC+2*i+1}")
    a(f"""s_cmp_ge_u32 s33, 18
s_cbranch_scc1 L_q_k""")
    a(f"s_mov_b32 s36, {f2u(C_SCALE)}")
    for i in range(8):
        a(f"""v_lshlrev_b32 v20, 16, v{8+i}
v_and_b32 v21, 0xffff0000, v{8+i}
v_mul_f32 v20, s36, v20
v_mul_f32 v21, s36, v21
v_cvt_pk_bf16_f32 v{8+i}, v20, v21""")
    a(f"""s_mov_b32 s41, {Q_HEAD}
s_mul_i32 s42, s32, 1152
s_add_u32 s42, s42, {WS_Q}
s_mov_b32 s43, 1024
v_mov_b32 v6, v2                   ; position
s_branch L_q_st""")
    a.label("L_q_k")
    a(f"""s_sub_u32 s33, s33, 18
s_mov_b32 s41, {KV_HEAD}
s_mul_i32 s42, s32, {TILE_B}
s_add_u32 s42, s42, {WS_KV}
s_mov_b32 s43, 2240
v_and_b32 v6, 0x13, v2
v_bfe_u32 v7, v2, 2, 1
v_lshl_or_b32 v6, v7, 3, v6
v_bfe_u32 v7, v2, 3, 1
v_lshl_or_b32 v6, v7, 2, v6""")
    a.label("L_q_st")
    for g in range(4):
        a(f"""s_lshl_b32 s36, s33, 3
s_add_u32 s36, s36, {2*g}
v_add_u32 v20, s36, v3
v_mul_u32_u24 v21, 57, v20
v_lshrrev_b32 v21, 9, v21
v_mul_u32_u24 v22, 9, v21
v_sub_u32 v22, v20, v22            ; r
v_cmp_lt_u32 vcc, 4, v22
v_subrev_u32 v23, 5, v22
v_lshlrev_b32 v21, 1, v21
v_cndmask_b32 v23, v22, v23, vcc
v_addc_co_u32 v21, vcc, 0, v21, vcc ; head
v_mul_lo_u32 v21, v21, s41
v_lshrrev_b32 v24, 1, v23
v_lshl_add_u32 v24, v24, 9, v21
v_and_b32 v25, 1, v23
v_lshl_add_u32 v24, v25, 3, v24
v_lshl_add_u32 v24, v6, 4, v24
v_lshl_add_u32 v25, v6, 2, v21
v_add_u32 v25, s43, v25
v_add_u32 v26, s41, v25
v_cmp_ne_u32 vcc, 4, v22
s_and_saveexec_b64 s[44:45], vcc
s_cbranch_execz L_q_s{g}a
buffer_store_dwordx2 {vr(8+2*g,2)}, v24, s[8:11], s42 offen
L_q_s{g}a:
s_andn2_b64 exec, s[44:45], exec
s_cbranch_execz L_q_s{g}b
buffer_store_dword v{8+2*g}, v25, s[8:11], s42 offen
buffer_store_dword v{9+2*g}, v26, s[8:11], s42 offen
L_q_s{g}b:
s_mov_b64 exec, s[44:45]""")
    a("s_endpgm")
    a.label("L_q_v")
    nt_loop(a,"vv",36,4,4,12,8,34,35,ACC)
    for i in range(8): a(f"v_cvt_pk_bf16_f32 v{8+i}, v{ACC+2*i}, v{ACC+2*i+1}")
    a(f"""s_sub_u32 s33, s33, 36
s_lshl_b32 s36, s33, 5
v_add_u32 v20, s36, v2
v_mul_u32_u24 v21, 3641, v20
v_lshrrev_b32 v21, 16, v21         ; head
v_mul_u32_u24 v22, 18, v21
v_sub_u32 v22, v20, v22            ; d
s_mov_b32 s41, {KV_HEAD}
v_mul_lo_u32 v21, v21, s41
v_mul_u32_u24 v23, 304, v3
v_add_u32 v21, v21, v23
v_lshl_add_u32 v24, v22, 4, v21
s_mul_i32 s42, s32, {TILE_B}
s_add_u32 s42, s42, {WS_KV}
buffer_store_dwordx4 v[8:11], v24, s[8:11], s42 offen offset:1024
buffer_store_dwordx4 v[12:15], v24, s[8:11], s42 offen offset:{1024+608}
v_mov_b32 v16, 0x3f803f80
v_mov_b32 v17, 0x3f803f80
v_mov_b32 v18, 0x3f803f80
v_mov_b32 v19, 0x3f803f80
v_cmp_eq_u32 vcc, 0, v22
s_and_saveexec_b64 s[44:45], vcc
s_cbranch_execz L_q_end
buffer_store_dwordx4 v[16:19], v21, s[8:11], s42 offen offset:{1024+288}
buffer_store_dwordx4 v[16:19], v21, s[8:11], s42 offen offset:{1024+608+288}""")
    a.label("L_q_end"); a("s_endpgm")
    return kernel_head(name)+a.text()+kernel_desc(name,64,64)

def gen_oproj(name="oproj_kernel"):
    a=Asm(); ACC=64
    wave_tile_prologue(a, 128*9, "L_o_end")
    a(f"""s_load_dwordx2 s[4:5], s[0:1], {KA_WS}
s_load_dwordx2 s[6:7], s[0:1], {KA_OUT}
s_and_b32 s32, s3, 127
s_lshr_b32 s33, s3, 7
s_waitcnt lgkmcnt(0)""")
    srd(a,8,4,5,WS_SIZE); srd(a,12,6,7,S*1152*2)
    a(f"""v_lshlrev_b32 v4, 4, v1
s_mul_i32 s34, s32, {18*1024}
s_add_u32 s34, s34, {WS_O}
s_mul_i32 s35, s33, {4*18*1024}
s_add_u32 s35, s35, {WS_WO}
s_add_u32 s36, s35, {18*1024}
s_add_u32 s37, s36, {18*1024}
s_add_u32 s38, s37, {18*1024}
s_mov_b32 s40, 18""")
    for i in range(16): a(f"v_mov_b32 v{ACC+i}, 0")
    a.label("L_o_loop")
    a(f"buffer_load_dwordx4 v[8:11], v4, s[8:11], s34 offen")
    for j in range(4): a(f"buffer_load_dwordx4 {vr(12+4*j,4)}, v4, s[8:11], s{35+j} offen")
    a("s_waitcnt vmcnt(0)")
    for j in range(4): a(f"v_mfma_f32_16x16x32_bf16 {vr(ACC+4*j,4)}, {vr(12+4*j,4)}, v[8:11], {vr(ACC+4*j,4)}")
    a(f"""v_add_u32 v4, 1024, v4
s_sub_u32 s40, s40, 1
s_nop 7
s_cmp_lg_u32 s40, 0
s_cbranch_scc1 L_o_loop
s_nop 15
v_and_b32 v5, 15, v1
v_lshrrev_b32 v6, 4, v1
v_mul_u32_u24 v5, 2304, v5
v_lshl_add_u32 v5, v6, 3, v5
s_mul_i32 s34, s32, {16*2304}
s_lshl_b32 s35, s33, 7
s_add_u32 s34, s34, s35
s_add_u32 s34, s34, 1152""")
    for i in range(8): a(f"v_cvt_pk_bf16_f32 v{8+i}, v{ACC+2*i}, v{ACC+2*i+1}")
    for j in range(4): a(f"buffer_store_dwordx2 {vr(8+2*j,2)}, v5, s[12:15], s34 offen offset:{32*j}")
    a.label("L_o_end"); a("s_endpgm")
    return kernel_head(name)+a.text()+kernel_desc(name,80,48)
```

```python
import sys
from common import *
from k2 import gen_k2
from simple import *
nempty=int(sys.argv[2]) if len(sys.argv)>2 else 0
L=[("prep_kernel",648,256,0),("f1_kernel",576,256,0),("f2_kernel",288,256,0),("qkv_kernel",864,256,0),("attn_kernel",256,768,163840),("oproj_kernel",288,256,0)]
for i in range(nempty): L.append(("empty_kernel",256,768,163840))
s="; baseline\n"
for n,g,b,l in L: s+=f"; @launch kernel={n} grid=({g},1,1) block=({b},1,1) lds={l}\n"
s+='.amdgcn_target "amdgcn-amd-amdhsa--gfx950"\n'
s+=gen_prep()+gen_f1()+gen_f2()+gen_qkv()+gen_k2(unroll=16)+gen_oproj()
if nempty: s+=kernel_head("empty_kernel")+"    s_endpgm\n"+kernel_desc("empty_kernel",96,100)
from hz import autopad
s=autopad(s)
open(sys.argv[1],"w").write(s)
```

```python
import struct
S=2048; D=576; H=32; DH=18
TB=2240
HS=64*TB
WS_B=0
WS_L=0x900000
WS_O=0xA00000
WS_F=0xD00000
WS_F2=0xD10000
WS_WO=0xE00000
LDS_C=159744
WS_ST=0x4000000
WS_SIZE=0x10000000
KA_AX=0; KA_SRE=8; KA_SIM=16; KA_HRE=24; KA_HIM=32; KA_BX=40; KA_WQKV=48; KA_WO=56; KA_OUT=64; KA_DBG=72; KA_WS=80
C_SCALE = DH**-0.5 * 1.4426950408889634
def f2u(x): return struct.unpack("<I", struct.pack("<f", x))[0]

class Asm:
    def __init__(self): self.l=[]
    def __call__(self, s):
        for x in s.split("\n"):
            x=x.rstrip()
            if x.strip(): self.l.append(x.strip() if x.strip().endswith(":") or x.startswith(".") else "    "+x.strip())
    def label(self, n): self.l.append(n+":")
    def text(self): return "\n".join(self.l)+"\n"

def vr(a,n): return f"v[{a}:{a+n-1}]" if n>1 else f"v{a}"
def sr(a,n): return f"s[{a}:{a+n-1}]" if n>1 else f"s{a}"

def kernel_head(name):
    return f""".text
.globl {name}
.p2align 8
.type {name},@function
{name}:
"""
def kernel_desc(name, nvgpr, nsgpr=102, accum=None):
    if accum is None: accum=(nvgpr+3)//4*4
    return f""".section .rodata,"a"
.p2align 6
.amdhsa_kernel {name}
  .amdhsa_next_free_vgpr {nvgpr}
  .amdhsa_next_free_sgpr {nsgpr}
  .amdhsa_accum_offset {accum}
  .amdhsa_group_segment_fixed_size 0
  .amdhsa_kernarg_size 88
  .amdhsa_user_sgpr_count 2
  .amdhsa_user_sgpr_kernarg_segment_ptr 1
  .amdhsa_system_sgpr_workgroup_id_x 1
.end_amdhsa_kernel
"""
def srd(a, sbase, lo, hi, size):
    a(f"s_mov_b32 s{sbase}, s{lo}\ns_mov_b32 s{sbase+1}, s{hi}\ns_mov_b32 s{sbase+2}, {size}\ns_mov_b32 s{sbase+3}, 0x00020000")

def stamp_init(a, on):
    if not on: return
    for i in range(64,96,2): a(f"s_mov_b64 s[{i}:{i+1}], 0")
def stamp(a, k, on):
    if not on: return
    a(f"s_memtime s[96:97]\ns_memrealtime s[98:99]\ns_waitcnt lgkmcnt(0)\ns_mov_b32 s{64+k}, s96\ns_mov_b32 s{80+k}, s98")
def stamp_flush(a, on, region=0):
    if not on: return
    a(f"""s_mov_b64 exec, -1
s_lshl_b32 s96, s2, 4
s_add_u32 s96, s96, s3
s_lshl_b32 s96, s96, 7
s_add_u32 s96, s96, {WS_ST+region*0x100000}
v_mov_b32 v0, 0""")
    for i in range(32): a(f"v_writelane_b32 v0, s{64+i}, {i}")
    a(f"""v_mbcnt_lo_u32_b32 v1, -1, 0
v_mbcnt_hi_u32_b32 v1, -1, v1
v_lshlrev_b32 v1, 2, v1
s_mov_b32 exec_hi, 0
buffer_store_dword v0, v1, s[8:11], s96 offen
s_waitcnt vmcnt(0)""")
```

```python
import struct
S=2048; D=576; H=32; DH=18
TB=2240
HS=64*TB
WS_B=0
WS_L=0x900000
WS_O=0xA00000
WS_F=0xD00000
WS_F2=0xD20000
WS_F3=0xD80000
WS_AB=0xE00000
LDS_L=64*TB
LDS_C=159744
C_FULL=0; C_FREE=72; C_DONE=144; C_NONCE=152; C_PH=156; C_PG=172; C_WO=180; C_S2=184
OOB=0x30000
WS_ST=0x4000000
WS_SIZE=0x10000000
KA_AX=0; KA_SRE=8; KA_SIM=16; KA_HRE=24; KA_HIM=32; KA_BX=40; KA_WQKV=48; KA_WO=56; KA_OUT=64; KA_DBG=72; KA_WS=80
C_SCALE = DH**-0.5 * 1.4426950408889634
def f2u(x): return struct.unpack("<I", struct.pack("<f", x))[0]
def sigma(t): return ((t&7)>>2)*32+(t>>3)*4+(t&3)

class Asm:
    def __init__(self): self.l=[]
    def __call__(self, s):
        for x in s.split("\n"):
            x=x.rstrip()
            if x.strip(): self.l.append(x.strip() if x.strip().endswith(":") or x.startswith(".") else "    "+x.strip())
    def label(self, n): self.l.append(n+":")
    def text(self): return "\n".join(self.l)+"\n"

def vr(a,n): return f"v[{a}:{a+n-1}]" if n>1 else f"v{a}"
def sr(a,n): return f"s[{a}:{a+n-1}]" if n>1 else f"s{a}"

def kernel_head(name):
    return f""".text
.globl {name}
.p2align 8
.type {name},@function
{name}:
"""
def kernel_desc(name, nvgpr, nsgpr=102, accum=None):
    if accum is None: accum=(nvgpr+3)//4*4
    return f""".section .rodata,"a"
.p2align 6
.amdhsa_kernel {name}
  .amdhsa_next_free_vgpr {nvgpr}
  .amdhsa_next_free_sgpr {nsgpr}
  .amdhsa_accum_offset {accum}
  .amdhsa_group_segment_fixed_size 0
  .amdhsa_kernarg_size 88
  .amdhsa_user_sgpr_count 2
  .amdhsa_user_sgpr_kernarg_segment_ptr 1
  .amdhsa_system_sgpr_workgroup_id_x 1
.end_amdhsa_kernel
"""
def srd(a, sbase, lo, hi, size):
    a(f"s_mov_b32 s{sbase}, s{lo}\ns_mov_b32 s{sbase+1}, s{hi}\ns_mov_b32 s{sbase+2}, {size}\ns_mov_b32 s{sbase+3}, 0x00020000")

GUARD=[False]
def guard(a):
    if GUARD[0]: a("s_add_u32 s100, s100, 1\ns_cmp_gt_u32 s100, 100000\ns_cbranch_scc1 L_guard")
def lds_inc(a, vC, vOne, off):
    a(f"s_mov_b64 exec, 1\nds_add_u32 v{vC}, v{vOne} offset:{off}\ns_mov_b64 exec, -1")
def spin_lds(a, tag, off, target, vA, vT, sT=30, sleep=0):
    a.label(f"L_{tag}"); guard(a)
    a(f"""
ds_read_b32 v{vT}, v{vA} offset:{off}
s_waitcnt lgkmcnt(0)
v_readfirstlane_b32 s{sT}, v{vT}
s_cmp_ge_u32 s{sT}, {target}""")
    if sleep:
        a(f"s_cbranch_scc1 L_{tag}_ok\ns_sleep {sleep}\ns_branch L_{tag}\nL_{tag}_ok:")
    else:
        a(f"s_cbranch_scc0 L_{tag}")
def poll_flags(a, tag, vA, vT, sOff, sleep=4):
    a.label(f"L_{tag}"); guard(a)
    a(f"""buffer_load_dword v{vT}, v{vA}, s[8:11], s{sOff} offen sc1
s_waitcnt vmcnt(0)
v_cmp_eq_u32 vcc, s39, v{vT}
s_cmp_eq_u64 vcc, -1
s_cbranch_scc1 L_{tag}_ok
s_sleep {sleep}
s_branch L_{tag}
L_{tag}_ok:""")

def stamp_init(a, on):
    if not on: return
    for i in range(64,96,2): a(f"s_mov_b64 s[{i}:{i+1}], 0")
def stamp(a, k, on):
    if not on: return
    a(f"s_memtime s[96:97]\ns_memrealtime s[98:99]\ns_waitcnt lgkmcnt(0)\ns_mov_b32 s{64+k}, s96\ns_mov_b32 s{80+k}, s98")
def stamp_flush(a, on, region=0):
    if not on: return
    a(f"""s_mov_b64 exec, -1
s_lshl_b32 s96, s2, 4
s_add_u32 s96, s96, s3
s_lshl_b32 s96, s96, 7
s_add_u32 s96, s96, {WS_ST+region*0x100000}
v_mov_b32 v0, 0""")
    for i in range(32): a(f"v_writelane_b32 v0, s{64+i}, {i}")
    a(f"""v_mbcnt_lo_u32_b32 v1, -1, 0
v_mbcnt_hi_u32_b32 v1, -1, v1
v_lshlrev_b32 v1, 2, v1
s_mov_b32 exec_hi, 0
buffer_store_dword v0, v1, s[8:11], s96 offen
s_waitcnt vmcnt(0)""")
```

```python
import re
TRANS=("v_exp_f32","v_log_f32","v_rcp_f32","v_rsq_f32","v_sqrt_f32","v_sin_f32","v_cos_f32","v_rcp_iflag_f32","v_exp_f16","v_log_f16","v_rcp_f16")
def regs(op):
    op=op.strip()
    op=re.sub(r"^[-|]+|[|]+$","",op)
    m=re.fullmatch(r"([vsa])(\d+)",op)
    if m: return {(m.group(1),int(m.group(2)))}
    m=re.fullmatch(r"([vsa])\[(\d+):(\d+)\]",op)
    if m: return {(m.group(1),i) for i in range(int(m.group(2)),int(m.group(3))+1)}
    if op=="vcc": return {("s","vcc")}
    if op in("vcc_lo","vcc_hi"): return {("s","vcc")}
    if op=="m0": return {("s","m0")}
    if op in("exec","exec_lo","exec_hi"): return {("s","exec")}
    return set()
class I:
    def __init__(s,line):
        s.line=line
        t=line.split(";")[0].strip()
        s.label=t[:-1] if t.endswith(":") else None
        s.dirv=t.startswith(".") or not t
        s.op=""; s.w=set(); s.r=set(); s.kind=None; s.states=0
        if s.label or s.dirv: return
        p=t.split(None,1); s.op=p[0]; rest=p[1] if len(p)>1 else ""
        s.rest=rest
        ops=[x.strip() for x in re.split(r",(?![^\[]*\])",rest)]
        mods=""
        if ops:
            q=ops[-1].split(None,1); ops[-1]=q[0] if q else ""; mods=q[1] if len(q)>1 else ""
        s.mods=mods; s.ops=ops; s.states=1
        op=s.op
        if op=="s_nop": s.states=int(ops[0],0)+1; s.kind="nop"; return
        if op.startswith(("v_mfma","v_smfmac")):
            s.kind="mfma"; s.w=regs(ops[0]); s.A=regs(ops[1]); s.B=regs(ops[2])
            if op.startswith("v_smfmac"): s.C=regs(ops[0]); s.AB=s.A|s.B|regs(ops[3])
            else: s.C=regs(ops[3]); s.AB=s.A|s.B
            s.r=s.AB|s.C
            s.passes=8 if "32x32" in op else 4
            return
        if op.startswith("v_"):
            s.kind="valu"
            if op.startswith(TRANS): s.states=2
            if op.startswith("v_cmpx"): s.w={("s","exec")}; src=ops if len(ops)==2 else ops[1:]
            elif op.startswith("v_permlane") and "swap" in op: s.w=regs(ops[0])|regs(ops[1]); src=ops
            elif re.match(r"v_(add|sub|subrev|addc|subb|subbrev)_co_",op) or op.startswith("v_div_scale") or op.startswith("v_mad_u64") :
                s.w=regs(ops[0])|regs(ops[1]); src=ops[2:]
            else: s.w=regs(ops[0]); src=ops[1:]
            for o in src: s.r|=regs(o)
            if op.startswith("v_cndmask") and len(ops)==3: s.r|={("s","vcc")}
            if op.startswith(("v_fmac","v_mac","v_pk_fmac","v_dot2c","v_writelane")) or "op_sel" in mods or "sdwa" in op or "dst_sel" in mods: s.r|=regs(ops[0])
            return
        if op.startswith(("buffer_","global_","flat_")):
            s.kind="vmem"
            s.lds=" lds" in (" "+mods)
            if "store" in op or ("atomic" in op):
                for o in ops: s.r|=regs(o)
                s.sdata=regs(ops[0]) if op.startswith("buffer") else regs(ops[1])
                if "atomic" in op and ("sc0" in mods): s.w=regs(ops[0])
                s.wide=("x3" in op or "x4" in op)
            elif s.lds or "load_lds" in op:
                s.lds=True
                for o in ops: s.r|=regs(o)
            else:
                s.w=regs(ops[0])
                for o in ops[1:]: s.r|=regs(o)
            return
        if op.startswith("ds_"):
            s.kind="ds"
            if op.startswith(("ds_read","ds_bpermute","ds_permute","ds_swizzle")) or "_rtn" in op:
                s.w=regs(ops[0])
                for o in ops[1:]: s.r|=regs(o)
            else:
                for o in ops: s.r|=regs(o)
            return
        if op.startswith("s_"):
            s.kind="salu"
            if op.startswith(("s_cmp","s_cbranch","s_branch","s_waitcnt","s_barrier","s_endpgm","s_setprio","s_sleep","s_bitcmp")):
                for o in ops: s.r|=regs(o)
            else:
                s.w=regs(ops[0])
                for o in ops[1:]: s.r|=regs(o)
                if "saveexec" in op: s.w|={("s","exec")}
            return
        raise ValueError(line)
def need(p,c):
    n=0
    pv={x for x in p.w if x[0] in "va"}; ps={x for x in p.w if x[0]=="s"}
    if p.kind=="valu":
        if c.kind=="valu" and ps&c.r: n=max(n,4 if c.op.startswith(("v_readlane","v_writelane")) else 2)
        if c.kind=="vmem" and ps&c.r: n=max(n,5)
        if c.kind=="valu" and c.op.startswith(("v_readlane","v_readfirstlane")) and pv&c.r: n=max(n,1)
        if c.kind=="valu" and (c.op.startswith("v_permlane") or "dpp" in c.op or "row_" in c.mods or "quad_perm" in c.mods) and pv&c.r: n=max(n,2)
        if p.op.startswith(TRANS) and c.kind=="valu" and not c.op.startswith(TRANS) and pv&c.r: n=max(n,1)
        if ("op_sel" in p.mods or "dst_sel" in p.mods) and c.kind=="valu" and pv&(c.r|c.w): n=max(n,1)
        if c.kind=="mfma" and pv&c.r: n=max(n,2)
        if ("s","exec") in p.w and c.kind=="mfma": n=max(n,4)
        if ("s","exec") in p.w and c.kind=="valu" and c.op.startswith(("v_readlane","v_readfirstlane","v_writelane","v_permlane")): n=max(n,4)
    if p.kind=="salu" and ("s","m0") in p.w:
        if (c.kind=="vmem" and c.lds) or c.op.startswith("s_movrel") or "addtid" in c.op: n=max(n,1)
    if p.kind=="vmem" and getattr(p,"wide",False) and c.kind in("valu","mfma") and p.sdata&c.w: n=max(n,2)
    if p.kind=="mfma":
        P=p.passes
        if c.kind=="mfma":
            if p.w&c.C and not (p.w==c.C and p.passes==c.passes): n=max(n,{4:6,8:10}[P])
            if p.w&c.AB: n=max(n,{4:8,8:12}[P])
            if p.w&c.w and not (p.w&c.C): n=max(n,0)
        elif c.kind in("valu","vmem","ds") and p.w&(c.r|c.w): n=max(n,{4:8,8:12}[P])
        if c.kind=="valu" and p.C&c.w: n=max(n,{4:3,8:7}[P])
    return n
def analyse(lines, pad=False, quiet=False):
    out=[]; ins=[I(l) for l in lines]
    labels={x.label:i for i,x in enumerate(ins) if x.label}
    real=[i for i,x in enumerate(ins) if x.kind]
    jumps={}
    for i,x in enumerate(ins):
        if x.op.startswith(("s_cbranch","s_branch")):
            jumps.setdefault(labels.get(x.ops[0]),[]).append(i)
    probs=[]
    extra={}
    def walk(c, j, dist, seen, linear):
        worst=0
        while j>=0 and dist<20:
            x=ins[j]
            if x.label and j in jumps:
                for src in jumps[j]:
                    if (src,dist) not in seen:
                        seen.add((src,dist))
                        w=walk(c, src-1+0, dist+1+extra.get(src,0), seen, False)
                        worst=max(worst,w)
            if x.kind:
                if x.op in("s_branch","s_endpgm"): return worst
                n=need(x,c)
                if n>dist:
                    worst=max(worst,n-dist)
                    if not quiet: probs.append((x.line.strip(), c.line.strip(), n, dist, linear))
                dist+=x.states+extra.get(j,0)
            j-=1
        return worst
    for i,x in enumerate(ins):
        if not x.kind or x.kind=="nop":
            continue
        w=walk(x,i-1,0,set(),True)
        if w and pad: extra[i]=w
    if pad:
        for i,x in enumerate(ins):
            if i in extra: out.append(f"    s_nop {extra[i]-1}")
            out.append(x.line)
        return out,probs
    return lines,probs
def autopad(text, verbose=True):
    lines=text.split("\n")
    out,probs=analyse(lines,pad=True)
    if verbose:
        for p in probs: print("PAD", p)
    _,p2=analyse(out)
    assert not p2, p2
    return "\n".join(out)
```

```python
from common import *
RING=73728
def gamma_line(b):
    if b>=9: return list(range(16))
    g0=16*b
    pieces=[u for u in range(15) if (g0+u)%9 in (0,2,5,7)]
    best=None
    for m in range(256):
        U0={(u if not (m>>u)&1 else u+8) for u in range(8)}
        U1=set(range(16))-U0
        p0=[u for u in pieces if u in U0 and u+1 in U0]
        p1=[u for u in pieces if u in U1 and u+1 in U1]
        if len(p0)==4 and len(p1)>=2 and (best is None or len(p1)>len(best[1])): best=(p0,p1,U1)
    p0,p1,U1=best
    out=[p0[0],p0[1],p0[0]+1,p0[1]+1,p0[2],p0[3],p0[2]+1,p0[3]+1]
    rest=sorted(U1-{p1[0],p1[0]+1,p1[1],p1[1]+1})
    out+=[p1[0],p1[1],p1[0]+1,p1[1]+1]+rest
    assert sorted(out)==list(range(16))
    return out

def ids(a):
    a(f"""s_and_b32 s27, s2, 7
s_lshr_b32 s26, s2, 3            ; j
s_and_b32 s24, s27, 3
s_lshl_b32 s24, s24, 1
s_and_b32 s28, s26, 1
s_add_u32 s24, s24, s28
s_lshr_b32 s25, s27, 2
s_mul_i32 s25, s25, 14
s_lshr_b32 s28, s26, 1
s_add_u32 s25, s25, s28
s_cmp_ge_u32 s26, 28
s_cselect_b32 s25, 27, s25
s_lshl_b32 s21, s27, 2
s_lshr_b32 s28, s26, 3
s_add_u32 s21, s21, s28          ; head
s_and_b32 s22, s26, 7            ; qb""")

DBG=set()
PH3=[1,2,0]
def phys(i): return PH3[i%3] if i<9 else 2+PH3[(i-9)%3]
def dep(i):
    if i<9: return i-3 if i>=3 else None
    k=i-9
    return None if k<2 else (7 if k==2 else i-3)
class Loader:
    def __init__(s, a, R=16, R0=8, rot="s_add_u32 s31, s24, s25"):
        s.a=a; s.R=R; s.R0=R0
        s.items=[]
        for i in range(18):
            if i<9: s.items+= [(i,'w',0),(i,'w',1)]
            s.items+=[(i,'x',n) for n in range(4)]
        s.issued=0
        a(f"""s_sub_u32 s23, s3, 8               ; w
s_and_b32 s27, s23, 1
s_lshl_b32 s27, s27, 2
v_lshrrev_b32 v2, 4, v1
v_add_u32 v3, s27, v2
v_and_b32 v4, 7, v1
v_xor_b32 v3, v3, v4
v_lshrrev_b32 v5, 3, v1
v_and_b32 v2, 1, v2
v_lshlrev_b32 v2, 2, v2
v_xor_b32 v2, v2, v4
v_mul_u32_u24 v6, 3456, v5
v_lshl_add_u32 v12, v2, 4, v6      ; W voffset
v_mul_u32_u24 v6, 1152, v5
v_lshl_add_u32 v8, v3, 4, v6       ; x voffset
s_lshl_b32 s28, s24, 8
s_lshl_b32 s29, s23, 3
s_add_u32 s28, s28, s29
s_mul_i32 s28, s28, 1152
s_mul_i32 s29, s29, 3456
s_lshl_b32 s30, s25, 7
s_add_u32 s29, s29, s30            ; W base
{rot}
s_mul_i32 s32, s31, 7282
s_lshr_b32 s32, s32, 16
s_mul_i32 s32, s32, 9
s_sub_u32 s31, s31, s32            ; kc
v_add_u32 v13, {32*3456}, v12
v_add_u32 v9, {32*1152}, v8
v_add_u32 v10, {64*1152}, v8
v_add_u32 v11, {96*1152}, v8""")
        while s.issued<R0: s.issue()
        a(f"""s_lshl_b32 s30, s23, 10
v_lshlrev_b32 v14, 4, v1
v_add_u32 v14, s30, v14
v_add_u32 v15, 65536, v14
v_add_u32 v6, {RING}, v14
v_add_u32 v7, {RING+65536}, v14""")
    def reg(s,n): return vr(16+4*(n%s.R),4)
    def issue(s):
        a=s.a; n=s.issued; i,k,m=s.items[n]
        if n==0 or s.items[n-1][0]!=i:
            if n: a("s_add_u32 s31, s31, 1\ns_cmp_eq_u32 s31, 9\ns_cselect_b32 s31, 0, s31")
            if i==9: a(f"s_add_u32 s28, s28, {128*1152}")
            if i<9: a(f"s_mul_i32 s33, s31, {64*3456}\ns_add_u32 s33, s33, s29")
            a(f"s_lshl_b32 s32, s31, 7\ns_add_u32 s32, s32, s28")
        if k=='w': a(f"buffer_load_dwordx4 {s.reg(n)}, v{12+m}, s[16:19], s33 offen")
        else: a(f"buffer_load_dwordx4 {s.reg(n)}, v{8+m}, s[12:15], s32 offen")
        s.issued+=1
        for d in DBG:
            if d.startswith("pace"): a(f"s_sleep 1" if d=="pace" else "\n".join(["s_nop 15"]*int(d[4:])))
    def main(s, st=False, vC=3, vOne=4):
        a=s.a; N=len(s.items)
        for n,(i,k,m) in enumerate(s.items):
            if k=='x' and m==0 and dep(i) is not None and "nofree" not in DBG:
                spin_lds(a,f"p1_fr{i}",C_FREE+4*dep(i),4,vC,5,sT=36)
            a(f"s_waitcnt vmcnt({s.issued-n-1})")
            o=(i*8192 if k=='w' else phys(i)*16384)+m*4096
            b=(14 if k=='w' else 6)+(o>>16)
            if "nowr" not in DBG: a(f"ds_write_b128 v{b}, {s.reg(n)} offset:{o&65535}")
            if k=='x' and m==3:
                a(f"ds_add_u32 v{vC}, v{vOne} offset:{C_FULL+4*i}")
                if "lst" in DBG:
                    if i<14: stamp(a,1+i,st)
                else:
                    if i==0: stamp(a,1,st)
                    if i==8: stamp(a,2,st)
            c=0
            if "burst" in DBG:
                if k=='x' and m==3:
                    while s.issued<min(N,n+1+s.R) and c<12: s.issue(); c+=1
            else:
                while s.issued<min(N,n+1+s.R) and c<2: s.issue(); c+=1
        if "lst" not in DBG: stamp(a,3,st)

def p1_mfma(a, sc="sc1", st=False, done="L_p1_done"):
    ACC=64; FB=[16,28,40,52]
    aX=[8,9,10,11]; aW=[12,13]; vC=14; vOne=15; vF=7
    dS=[96,97,98,99,100]
    a(f"""s_and_b32 s26, s3, 3             ; w
s_lshr_b32 s27, s3, 2              ; pass
s_sub_u32 s28, s25, 9
s_cmp_lt_u32 s25, 9
s_cselect_b32 s28, s25, s28
s_min_u32 s28, s28, 9""")
    for b in range(10):
        t=gamma_line(b)
        dw=[sum(t[8*i+c]<<(4*c) for c in range(8)) for i in range(2)]
        if b==0: a(f"s_mov_b32 s32, {dw[0]:#x}\ns_mov_b32 s33, {dw[1]:#x}")
        else: a(f"s_cmp_eq_u32 s28, {b}\ns_cselect_b32 s32, {dw[0]:#x}, s32\ns_cselect_b32 s33, {dw[1]:#x}, s33")
    a(f"""v_and_b32 v2, 31, v1
v_lshrrev_b32 v3, 5, v1                 ; h
v_bfe_u32 v4, v1, 1, 3
v_xor_b32 v4, v4, v3
s_lshl_b32 s28, s26, 12
s_lshl_b32 s29, s27, 15
s_add_u32 s28, s28, s29
s_add_u32 s28, s28, {RING}
v_lshlrev_b32 v5, 7, v2
v_add_u32 v5, s28, v5""")
    for j in range(4):
        a(f"v_xor_b32 v6, {2*j}, v4\nv_lshl_add_u32 v{aX[j]}, v6, 4, v5")
    a(f"""v_bfe_u32 v4, v1, 2, 2                ; r
v_lshl_add_u32 v5, v3, 3, v4
v_lshlrev_b32 v5, 7, v5                 ; (8h+r)*128
v_lshrrev_b32 v4, 1, v4
v_lshlrev_b32 v4, 6, v4                 ; swizzle
v_and_b32 v6, 3, v1
v_bfe_u32 v7, v1, 4, 1
v_lshl_add_u32 v6, v7, 2, v6
v_lshlrev_b32 v6, 2, v6                 ; mu*4""")
    for n in range(2):
        a(f"""v_lshrrev_b32 v7, v6, s{32+n}
v_and_b32 v7, 15, v7
v_lshlrev_b32 v7, 3, v7
v_xor_b32 v7, v7, v4
v_add_u32 v{aW[n]}, v7, v5""")
    a(f"""s_mul_i32 s28, s27, 36
s_add_u32 s28, s28, {LDS_C}
v_mov_b32 v{vC}, {OOB}
v_mov_b32 v{vOne}, 1
v_writelane_b32 v{vC}, s28, 0
s_lshl_b32 s30, s27, 5
s_lshl_b32 s28, s24, 2
s_add_u32 s30, s30, s28
s_add_u32 s30, s30, s26
s_mul_i32 s31, s30, {TB}
s_mov_b32 s36, {HS}
v_mov_b32 v{ACC}, 0
v_mov_b32 v{ACC+1}, 0""")
    for i in range(2,32,2): a(f"v_pk_mov_b32 {vr(ACC+i,2)}, {vr(ACC,2)}, {vr(ACC,2)}")
    a(f"""s_cmp_ge_u32 s25, 18
s_cbranch_scc1 L_p1_vsetup
v_lshlrev_b32 v4, 2, v1
v_lshrrev_b64 v[4:5], v4, s[32:33]
s_lshl_b32 s29, s25, 4
s_lshl_b32 s37, s30, 8
s_add_u32 s37, s37, {WS_L+1}
v_and_b32 v4, 15, v4
v_add_u32 v4, s29, v4                  ; gamma
v_mul_u32_u24 v5, 3641, v4
v_lshrrev_b32 v5, 15, v5               ; p = gamma/9
v_mul_u32_u24 v6, 9, v5
v_sub_u32 v6, v4, v6                   ; r
v_cmp_lt_u32 vcc, 4, v6
v_subrev_u32 v7, 5, v6
v_lshlrev_b32 v104, 1, v5
v_cndmask_b32 v7, v6, v7, vcc          ; j
v_addc_co_u32 v104, vcc, 0, v104, vcc
v_mul_lo_u32 v104, v104, s36
v_lshrrev_b32 v105, 1, v7
v_lshl_add_u32 v104, v105, 9, v104
v_and_b32 v105, 1, v7
v_lshl_add_u32 v104, v105, 3, v104
v_cmp_eq_u32 vcc, 4, v6
v_add_u32 v104, s31, v104
v_lshl_add_u32 v5, v5, 14, s37
v_cndmask_b32 v104, v104, v5, vcc
v_lshlrev_b32 v103, 2, v3              ; 4h""")
    for k,(n,g) in enumerate([(0,0),(0,2),(1,0),(1,2),(1,3)]):
        a(f"v_add_u32 v4, {4*(8*n+2*g)}, v103\nds_bpermute_b32 v{dS[k]}, v4, v104")
    a(f"""v_and_b32 v102, 0x13, v2
v_bfe_u32 v7, v2, 2, 1
v_lshl_or_b32 v102, v7, 3, v102
v_bfe_u32 v7, v2, 3, 1
v_lshl_or_b32 v102, v7, 2, v102        ; pos
v_lshlrev_b32 v102, 4, v102
s_waitcnt lgkmcnt(0)""")
    for k in range(3): a(f"v_add_u32 v{dS[k]}, v{dS[k]}, v102")
    for k in (3,4): a(f"""v_and_b32 v4, 1, v{dS[k]}
v_lshrrev_b32 v5, v4, v102
v_sub_u32 v5, v5, v4
v_add_u32 v{dS[k]}, v{dS[k]}, v5""")
    def mainloop(tag, vori):
        def rdA(m,j):
            F=FB[j]
            if "nox" not in DBG: a(f"ds_read_b128 {vr(F,4)}, v{aX[j]} offset:{PH3[m%3]*16384}")
            for q in range(0 if "now0" in DBG else 2): a(f"ds_read_b64_tr_b16 {vr(F+4+2*q,2)}, v{aW[0]} offset:{m*8192+(16*j+4*q)*128}")
        def rdB(m,j):
            F=FB[j]
            for q in range(0 if "now1" in DBG else 2): a(f"ds_read_b64_tr_b16 {vr(F+8+2*q,2)}, v{aW[1]} offset:{m*8192+(16*j+4*q)*128}")
        def mf(j,n):
            F=FB[j]; A,B=(F+4+4*n,F)
            if vori: A,B=B,A
            c=ACC+16*n
            a(f"v_mfma_f32_32x32x16_bf16 {vr(c,16)}, {vr(A,4)}, {vr(B,4)}, {vr(c,16)}")
        W=lambda n: None if "nowait" in DBG else a(f"s_waitcnt lgkmcnt({n})")
        spin_lds(a,f"p1_{tag}_w",C_FULL,4,vC,vF,sT=28,sleep=2)
        if "seq" in DBG:
            a(f"s_cmp_lt_u32 s3, 4\ns_cbranch_scc1 L_sq{tag}")
            spin_lds(a,f"p1_{tag}_sq",C_FREE-4,4,vC,vF,sT=28,sleep=8)
            a.label(f"L_sq{tag}")
        stamp(a,1,st)
        rdA(0,0); rdB(0,0); rdA(0,1); a(f"ds_read_b32 v{vF}, v{vC}"); rdB(0,1)
        a(f"s_mov_b32 s35, 0\ns_mov_b32 s34, {0 if 'nofull' in DBG else 4}\ns_mov_b32 s29, s34")
        a.label(f"L_p1_{tag}_loop")
        for m in range(3):
            W(6); mf(0,0); rdA(m,2)
            if m==0: a("s_add_u32 s35, s35, 1\ns_cmp_eq_u32 s35, 3")
            mf(0,1); rdB(m,2)
            if m==0: a("s_cselect_b32 s29, 0, s29")
            W(5); mf(1,0); a(f"ds_read_b32 v{vF}, v{vC} offset:{C_FULL+4*m+4}"); rdA(m,3)
            mf(1,1); rdB(m,3)
            W(5); mf(2,0)
            a(f"""v_readfirstlane_b32 s28, v{vF}
s_cmp_lt_u32 s28, s{29 if m==2 else 34}
s_cbranch_scc1 L_p1_{tag}_slow{m}""")
            a.label(f"L_p1_{tag}_go{m}")
            F=FB[0]
            if "nox" not in DBG: a(f"ds_read_b128 {vr(F,4)}, v{aX[0]} offset:{PH3[(m+1)%3]*16384}")
            mf(2,1)
            for q in range(0 if "now0" in DBG else 2): a(f"ds_read_b64_tr_b16 {vr(F+4+2*q,2)}, v{aW[0]} offset:{(m+1)*8192+4*q*128}")
            rdB(m+1,0)
            W(5); mf(3,0); rdA(m+1,1)
            a(f"ds_add_u32 v{vC}, v{vOne} offset:{C_FREE+4*m}")
            mf(3,1); rdB(m+1,1)
        for r in aW: a(f"v_add_u32 v{r}, 24576, v{r}")
        a(f"""v_add_u32 v{vC}, 12, v{vC}
s_cmp_lt_u32 s35, 3
s_cbranch_scc1 L_p1_{tag}_loop
s_branch L_p1_{tag}_end""")
        for m in range(3):
            a.label(f"L_p1_{tag}_slow{m}")
            spin_lds(a,f"p1_{tag}_sl{m}",C_FULL+4*m+4,4,vC,vF,sT=28)
            a(f"s_branch L_p1_{tag}_go{m}")
        a.label(f"L_p1_{tag}_end")
        a("s_waitcnt lgkmcnt(0)")
        stamp(a,2,st)
    def cvt(c):
        for i in range(8): a(f"v_cvt_pk_bf16_f32 v{c+i}, v{c+2*i}, v{c+2*i+1}")
    mainloop("qk", False)
    cvt(ACC)
    for sg in range(2): a(f"buffer_store_dwordx4 {vr(ACC+4*sg,4)}, v{dS[sg]}, s[8:11], 0 offen {sc}")
    cvt(ACC+16)
    a(f"buffer_store_dwordx4 {vr(ACC+16,4)}, v{dS[2]}, s[8:11], 0 offen {sc}")
    for g in range(2): a(f"buffer_store_dwordx2 {vr(ACC+20+2*g,2)}, v{dS[3+g]}, s[8:11], 0 offen {sc}")
    a(f"s_branch {done}")
    a.label("L_p1_vsetup")
    a(f"""s_sub_u32 s29, s25, 18
s_lshl_b32 s29, s29, 6
v_mul_u32_u24 v103, 304, v3
v_add_u32 v103, {32*HS+1024}, v103""")
    for n in range(2):
        a(f"""v_add_u32 v4, s29, v2
v_add_u32 v4, {32*n}, v4
v_mul_u32_u24 v5, 3641, v4
v_lshrrev_b32 v5, 16, v5            ; head
v_mul_u32_u24 v6, 18, v5
v_sub_u32 v6, v4, v6
v_mul_lo_u32 v5, v5, s36
v_lshl_add_u32 v5, v6, 4, v5
v_add_u32 v{dS[n]}, v5, v103""")
    a(f"""s_add_u32 s28, s29, 17
s_mul_i32 s28, s28, 3641
s_lshr_b32 s28, s28, 16            ; h0 = ceil(c0/18)
s_add_u32 s29, s29, 64
v_lshrrev_b32 v4, 2, v1
v_add_u32 v4, s28, v4              ; head
v_mul_u32_u24 v5, 18, v4
v_cmp_gt_u32 vcc, s29, v5
v_mul_lo_u32 v4, v4, s36
v_and_b32 v5, 3, v1
v_mul_u32_u24 v5, 304, v5
v_add_u32 v4, v4, v5
s_add_u32 s28, s31, {32*HS+1024+288}
v_mov_b32 v104, 0x3f803f80
v_mov_b32 v105, 0x3f803f80
v_mov_b32 v106, 0x3f803f80
v_mov_b32 v107, 0x3f803f80
s_mov_b64 exec, vcc
buffer_store_dwordx4 v[104:107], v4, s[8:11], s28 offen {sc}
s_mov_b64 exec, -1""")
    mainloop("v", True)
    for n in range(2):
        c=ACC+16*n; cvt(c)
        for jj in range(2): a(f"buffer_store_dwordx4 {vr(c+4*jj,4)}, v{dS[n]}, s[8:11], s31 offen offset:{608*jj} {sc}")
```

```python
from common import *
def get_nonce(a, tag, vA, vT):
    a.label(f"L_{tag}"); guard(a)
    a(f"""ds_read_b32 v{vT}, v{vA} offset:{C_NONCE}
s_waitcnt lgkmcnt(0)
v_readfirstlane_b32 s39, v{vT}
s_cmp_eq_u32 s39, 0
s_cbranch_scc1 L_{tag}""")
def qk_lines(a, lo, hi, add):
    a(f"""s_mul_i32 s{lo}, s21, 18
s_and_b32 s{hi}, s21, 1
s_lshl_b32 s{hi}, s{hi}, 1
s_sub_u32 s{lo}, s{lo}, s{hi}
s_add_u32 s{hi}, s{lo}, {add+19}
s_add_u32 s{lo}, s{lo}, {add}
s_lshr_b32 s{lo}, s{lo}, 6
s_lshr_b32 s{hi}, s{hi}, 6""")
WAITS={1:1,3:2,5:3}
def p2_attn(a, sc="sc1", st=False, done="L_p2_done", pb=5, shift=100.0, pg=(2,5), prio=1, oflag=True):
    unroll=8; NB=8
    vLane=1; vT0=2; vT1=3
    Q1=4; Q2=8; K2=10; K1=12; V0=16; V1=20
    aK1=24; aK2=25; aV=26; vIdx=27
    vM=28; vT2=29; vT3=30; vT4=31
    SA=32; SB=48; O=64; CM=80; vC=96
    qk_lines(a,26,27,0)
    a(f"""s_lshr_b32 s28, s3, 2              ; pass
s_mul_i32 s29, s28, 27
s_add_u32 s26, s26, s29
s_add_u32 s27, s27, s29
s_lshl_b32 s26, s26, 10
s_lshl_b32 s27, s27, 10
v_mov_b32 v{vT0}, s26
v_writelane_b32 v{vT0}, s27, 0
s_lshl_b32 s29, s22, 7
s_add_u32 s29, s29, {WS_F}
s_lshl_b32 s25, s28, 5
s_lshl_b32 s28, s22, 2
s_add_u32 s25, s25, s28
s_and_b32 s28, s3, 3
s_add_u32 s25, s25, s28          ; slot
s_mul_i32 s24, s21, {HS}
s_mul_i32 s26, s25, {TB}
s_add_u32 s24, s24, s26
s_lshr_b32 s26, s21, 1
s_lshl_b32 s26, s26, 14
s_lshl_b32 s27, s25, 8
s_add_u32 s26, s26, s27
s_and_b32 s27, s21, 1
s_lshl_b32 s28, s27, 2
s_add_u32 s26, s26, s28
s_add_u32 s26, s26, {WS_L}
s_lshl_b32 s25, s22, 3
s_add_u32 s25, s25, s3           ; qtile
v_lshlrev_b32 v{aK1}, 4, v{vLane}
v_and_b32 v{vT1}, 31, v{vLane}
v_lshlrev_b32 v{aK2}, 3, v{vT1}
v_mov_b32 v{vIdx}, 0xdddd""")
    a(f"""v_lshrrev_b32 v{vT2}, 5, v{vLane}
v_mul_u32_u24 v{vT2}, 19, v{vT2}
v_add_u32 v{vT2}, v{vT2}, v{vT1}
v_lshlrev_b32 v{vT2}, 4, v{vT2}
v_add_u32 v{aV}, 1024, v{vT2}
v_cmp_lt_u32 vcc, 18, v{vT1}
v_mov_b32 v{vT2}, {OOB}
v_mov_b32 v{vC}, {OOB}
s_mov_b32 s28, {LDS_C}
v_cndmask_b32 v{aV}, v{aV}, v{vT2}, vcc
v_writelane_b32 v{vC}, s28, 0""")
    for i in range(16): a(f"v_mov_b32 v{O+i}, 0")
    for j in range(8,16): a(f"v_mov_b32 v{SB+j}, 0")
    poll_flags(a,"p2_qp",vT0,vT3,29,sleep=4)
    stamp(a,7,st)
    a(f"""buffer_load_dwordx4 {vr(Q1,4)}, v{aK1}, s[8:11], s24 offen {sc}
buffer_load_dword v{Q2}, v{aK2}, s[8:11], s26 offen {sc}
v_add_u32 v{aK2}, {LDS_L}, v{aK2}
v_cmp_gt_u32 vcc, 32, v{vLane}
s_mov_b32 s28, {f2u(C_SCALE)}
s_cmp_eq_u32 s27, 0
v_cndmask_b32 v{aK2}, v{vT2}, v{aK2}, vcc
s_cselect_b64 s[30:31], vcc, 0
s_cselect_b64 s[32:33], 0, vcc
s_waitcnt vmcnt(0)""")
    stamp(a,8,st)
    for r in (Q1,Q1+1,Q1+2,Q1+3,Q2):
        a(f"""v_lshlrev_b32 v{vT2}, 16, v{r}
v_and_b32 v{vT3}, 0xffff0000, v{r}
v_mul_f32 v{vT2}, s28, v{vT2}
v_mul_f32 v{vT3}, s28, v{vT3}
v_cvt_pk_bf16_f32 v{r}, v{vT2}, v{vT3}""")
    a(f"""v_cndmask_b32 v{Q2+1}, 0, v{Q2}, s[32:33]
v_cndmask_b32 v{Q2}, 0, v{Q2}, s[30:31]""")
    spin_lds(a,"p2_w0",C_PH,4,vC,vT3,sleep=1)
    def LK1(t): return f"ds_read_b128 {vr(K1,4)}, v{aK1} offset:{t*TB}"
    def LK2(t): return f"ds_read_b64 {vr(K2,2)}, v{aK2} offset:{t*256}"
    def LV0(t): return f"ds_read_b128 {vr(V0,4)}, v{aV} offset:{t*TB}"
    def LV1(t): return f"ds_read_b128 {vr(V1,4)}, v{aV} offset:{t*TB+608}"
    def MA(Sx,c=None): return f"v_mfma_f32_32x32x8_bf16 {vr(Sx,16)}, {vr(K2,2)}, {vr(Q2,2)}, {vr(CM,16) if c is None else c}"
    def MB(Sx): return f"v_mfma_f32_32x32x16_bf16 {vr(Sx,16)}, {vr(K1,4)}, {vr(Q1,4)}, {vr(Sx,16)}"
    def MC(Sx): return f"v_smfmac_f32_32x32x32_bf16 {vr(O,16)}, {vr(V0,4)}, {vr(Sx,8)}, v{vIdx}"
    def MD(Sx): return f"v_smfmac_f32_32x32x32_bf16 {vr(O,16)}, {vr(V1,4)}, {vr(Sx+8,8)}, v{vIdx}"
    def E(Sx,j): return f"v_exp_f32 v{Sx+j}, v{Sx+j}"
    W3="s_waitcnt lgkmcnt(3)"
    stamp(a,9,st)
    a(LK2(0)); a(LK1(0))
    a("s_waitcnt lgkmcnt(0)")
    a(MA(SA,"0")); a(MB(SA))
    a(LV1(0)); a(LK2(1)); a(LK1(1)); a(LV0(0))
    ev=set(WAITS)|set(pg)|{pb}
    a(f"s_mov_b32 s27, 0\ns_mov_b32 s29, 0x03800000   ; 2^-120\ns_mov_b32 s28, {sum(1<<b for b in ev)}")
    a(f"s_cmp_ge_u32 s3, 4\ns_cbranch_scc0 L_p2_np\ns_setprio {prio}")
    a.label("L_p2_np")
    a(f"v_max3_f32 v{vM}, v{SA}, v{SA+1}, v{SA+2}")
    for j in range(3,15,2): a(f"v_max3_f32 v{vM}, v{vM}, v{SA+j}, v{SA+j+1}")
    a(f"""v_max_f32 v{vM}, v{vM}, v{SA+15}
v_mov_b32 v{vT2}, v{vM}
s_nop 1
v_permlane32_swap_b32 v{vM}, v{vT2}
s_nop 1
v_max_f32 v{vM}, v{vM}, v{vT2}
v_sub_f32 v{vM}, {-shift!r}, v{vM}""")
    for i in range(16): a(f"v_mov_b32 v{CM+i}, v{vM}")
    for i in range(16): a(f"v_add_f32 v{SA+i}, v{SA+i}, v{vM}")
    stamp(a,10,st)
    a(".p2align 6")
    a.label("L_p2_loop")
    for u in range(unroll):
        Sc,Sn=(SA,SB) if u%2==0 else (SB,SA)
        a(E(Sc,0)); a(E(Sc,1))
        a(W3)
        a(MD(Sn)); a(LV1(u))
        for j in range(2,6): a(E(Sc,j))
        a(W3)
        a(MA(Sn)); a(LK2(u+2))
        for j in range(6,10): a(E(Sc,j))
        a(W3)
        a(MB(Sn)); a(LK1(u+2))
        for j in range(10,14): a(E(Sc,j))
        a(W3)
        a(MC(Sc)); a(LV0(u+1))
        a(E(Sc,14)); a(E(Sc,15))
    a(f"""v_add_u32 v{aK1}, {unroll*TB}, v{aK1}
v_add_u32 v{aK2}, {unroll*256}, v{aK2}
v_add_u32 v{aV}, {unroll*TB}, v{aV}
s_add_u32 s27, s27, 1
s_bitcmp1_b32 s28, s27
s_cbranch_scc1 L_p2_event""")
    a.label("L_p2_nobar")
    a(f"s_cmp_lt_u32 s27, {NB}\ns_cbranch_scc1 L_p2_loop")
    a("s_waitcnt lgkmcnt(0)")
    a(MD(SB))
    stamp(a,11,st)
    a(f"""v_and_b32 v{vT0}, 0x13, v{vLane}
v_bfe_u32 v{vT1}, v{vLane}, 2, 1
v_lshl_or_b32 v{vT0}, v{vT1}, 3, v{vT0}
v_bfe_u32 v{vT1}, v{vLane}, 3, 1
v_lshl_or_b32 v{vT0}, v{vT1}, 2, v{vT0}
v_lshrrev_b32 v{vT1}, 4, v{vT0}
v_mul_u32_u24 v{vT1}, {18*1024}, v{vT1}
v_and_b32 v{vT0}, 15, v{vT0}
v_lshl_add_u32 v{vT0}, v{vT0}, 4, v{vT1}
v_lshrrev_b32 v{vT1}, 5, v{vLane}
v_lshl_add_u32 v{vT1}, v{vT1}, 8, v{vT0}
s_mul_i32 s36, s25, {2*18*1024}
s_add_u32 s36, s36, {WS_O}
s_lshl_b32 s34, s21, 9
s_add_u32 s34, s34, s36
s_lshr_b32 s35, s21, 2
s_lshl_b32 s35, s35, 8
s_add_u32 s35, s35, s36
s_and_b32 s37, s21, 3
s_lshl_b32 s37, s37, 2
s_add_u32 s35, s35, s37
s_add_u32 s35, s35, {64*256}""")
    a.label("L_p2_finish")
    a(f"""v_mov_b32 v{vM}, v{O+10}
v_mov_b32 v{vT2}, v{O+10}
v_mul_f32 v{vT3}, 0, v{O}
v_cmp_gt_u32 vcc, 32, v{vLane}
v_permlane32_swap_b32 v{vM}, v{vT2}""")
    for i in range(1,8): a(f"v_fma_f32 v{vT3}, v{O+i}, 0, v{vT3}")
    a(f"""v_fma_f32 v{vT3}, v{vM}, 0, v{vT3}
v_cndmask_b32 v{O+8}, 0, v{O+8}, vcc
v_cndmask_b32 v{O+9}, 0, v{O+9}, vcc
v_cmp_nle_f32 s[32:33], s29, v{vM}
v_fma_f32 v{vT3}, v{O+8}, 0, v{vT3}
v_fma_f32 v{vT3}, v{O+9}, 0, v{vT3}
v_rcp_f32 v{vM}, v{vM}
v_cmp_u_f32 s[30:31], v{vT3}, v{vT3}
s_nop 0
s_or_b64 s[30:31], s[30:31], s[32:33]
s_cmp_lg_u32 s27, 0xffff
s_cselect_b64 s[30:31], s[30:31], 0
s_cmp_lg_u64 s[30:31], 0
s_cbranch_scc1 L_p2_fallback""")
    for i in range(10): a(f"v_mul_f32 v{O+i}, v{O+i}, v{vM}")
    for i in range(5): a(f"v_cvt_pk_bf16_f32 v{SA+i}, v{O+2*i}, v{O+2*i+1}")
    a(f"""v_permlane32_swap_b32 v{SA}, v{SA+2}
v_permlane32_swap_b32 v{SA+1}, v{SA+3}
s_nop 1
buffer_store_dwordx4 {vr(SA,4)}, v{vT1}, s[8:11], s34 offen {sc}
s_mov_b32 exec_hi, 0
buffer_store_dword v{SA+4}, v{vT0}, s[8:11], s35 offen {sc}
s_mov_b32 exec_hi, -1""")
    stamp(a,12,st)
    if oflag:
        a(f"""s_lshl_b32 s34, s25, 5
s_add_u32 s34, s34, s21
s_lshl_b32 s34, s34, 7
s_add_u32 s34, s34, {WS_F2}
v_mov_b32 v{vT3}, s39
v_mov_b32 v{vT2}, 0
s_mov_b64 exec, 1
s_waitcnt vmcnt(0)
buffer_store_dword v{vT3}, v{vT2}, s[8:11], s34 offen sc1
s_mov_b64 exec, -1""")
    a(f"s_branch {done}")
    a.label("L_p2_event")
    a(f"""s_cmp_lg_u32 s27, {pb}
s_cbranch_scc1 L_p2_ev1
s_setprio 0
L_p2_ev1:""")
    for k,b in enumerate(pg):
        a(f"""s_cmp_lg_u32 s27, {b}
s_cbranch_scc1 L_p2_ev2_{k}
v_mov_b32 v{vT3}, 1
s_mov_b64 exec, 1\nds_add_u32 v{vC}, v{vT3} offset:{C_PG+4*k}\ns_mov_b64 exec, -1
s_waitcnt lgkmcnt(0)
L_p2_ev2_{k}:""")
    for b,k in WAITS.items():
        a(f"s_cmp_lg_u32 s27, {b}\ns_cbranch_scc1 L_p2_ev3_{k}")
        spin_lds(a,f"p2_spin{k}",C_PH+4*k,4,vC,vT3)
        a.label(f"L_p2_ev3_{k}")
    a("s_branch L_p2_nobar")
    a.label("L_p2_fallback")
    a(f"""v_subrev_u32 v{aK1}, {64*TB}, v{aK1}
v_and_b32 v{aK2}, 31, v{vLane}
v_lshlrev_b32 v{aK2}, 3, v{aK2}
v_subrev_u32 v{aV}, {64*TB}, v{aV}
v_mov_b32 v{vM}, 0xff800000
s_add_u32 s38, s21, 32
s_mul_i32 s38, s38, {HS}
s_lshr_b32 s24, s21, 1
s_add_u32 s24, s24, 16
s_lshl_b32 s24, s24, 14
s_add_u32 s24, s24, {WS_L}
s_mov_b32 s26, s38
s_mov_b32 s28, s24
s_mov_b32 s27, 0""")
    GK=f"buffer_load_dwordx2 {vr(K2,2)}, v{aK2}, s[8:11], s28 offen {sc}\nbuffer_load_dwordx4 {vr(K1,4)}, v{aK1}, s[8:11], s26 offen {sc}"
    a.label("L_p2_fb1")
    a(GK)
    a(f"""s_add_u32 s26, s26, {TB}
s_add_u32 s28, s28, 256
s_waitcnt vmcnt(0)""")
    a(MA(SA,"0")); a(MB(SA)); a("s_nop 15")
    for j in range(0,16,2): a(f"v_max3_f32 v{vM}, v{vM}, v{SA+j}, v{SA+j+1}")
    a(f"""s_add_u32 s27, s27, 1
s_cmp_lt_u32 s27, 64
s_cbranch_scc1 L_p2_fb1
v_mov_b32 v{vT2}, v{vM}
s_mov_b32 s26, s38
s_mov_b32 s28, s24
v_permlane32_swap_b32 v{vM}, v{vT2}
s_mov_b32 s27, 0
s_nop 1
v_max_f32 v{vM}, v{vM}, v{vT2}""")
    for i in range(16): a(f"v_mov_b32 v{O+i}, 0")
    a.label("L_p2_fb2")
    a(GK)
    a(f"""buffer_load_dwordx4 {vr(V0,4)}, v{aV}, s[8:11], s26 offen {sc}
buffer_load_dwordx4 {vr(V1,4)}, v{aV}, s[8:11], s26 offen offset:608 {sc}
s_add_u32 s26, s26, {TB}
s_add_u32 s28, s28, 256
s_waitcnt vmcnt(0)""")
    a(MA(SA,"0")); a(MB(SA)); a("s_nop 15")
    for j in range(16): a(f"v_sub_f32 v{SA+j}, v{SA+j}, v{vM}")
    for j in range(16): a(E(SA,j))
    a("s_nop 2")
    a(MC(SA)); a(MD(SA))
    a(f"""s_add_u32 s27, s27, 1
s_cmp_lt_u32 s27, 64
s_cbranch_scc1 L_p2_fb2
s_mov_b32 s27, 0xffff
s_nop 15
s_branch L_p2_finish""")

def p2_loader(a, sc="sc1", st=False, vC=3, vOne=4):
    qk_lines(a,26,27,576)
    a(f"""s_mul_i32 s28, s21, 18
s_add_u32 s29, s28, {1152+17}
s_add_u32 s28, s28, 1152
s_lshr_b32 s28, s28, 6
s_lshr_b32 s29, s29, 6
s_lshl_b32 s27, s27, 8
s_or_b32 s26, s26, s27
s_lshl_b32 s28, s28, 16
s_or_b32 s26, s26, s28
s_lshl_b32 s29, s29, 24
s_or_b32 s26, s26, s29
v_and_b32 v6, 24, v1
v_lshrrev_b32 v6, v6, s26
v_and_b32 v6, 31, v6
v_and_b32 v7, 7, v1
v_lshl_add_u32 v6, v6, 3, v7
v_lshlrev_b32 v6, 7, v6
s_mov_b32 s29, {WS_F}
s_add_u32 s24, s21, 32
s_mul_i32 s24, s24, {HS}
s_lshl_b32 s25, s23, 10
s_add_u32 s24, s24, s25
s_lshr_b32 s26, s21, 1
s_add_u32 s26, s26, 16
s_lshl_b32 s26, s26, 14
s_add_u32 s26, s26, s25
s_add_u32 s26, s26, {WS_L}
s_add_u32 s27, s25, {LDS_L}
s_cmp_ge_u32 s23, 2
s_cselect_b32 s28, 4096, 0
v_lshlrev_b32 v2, 4, v1""")
    def A(last=False):
        if last: a("s_sub_u32 s25, s25, s28\ns_sub_u32 s24, s24, s28")
        a(f"s_mov_b32 m0, s25\ns_add_u32 s25, s25, 4096\nbuffer_load_dwordx4 v2, s[8:11], s24 offen {sc} lds\ns_add_u32 s24, s24, 4096")
        if last: a("s_add_u32 s25, s25, s28\ns_add_u32 s24, s24, s28\ns_sub_u32 s25, s25, 2048\ns_sub_u32 s24, s24, 2048")
    def B(): a(f"s_mov_b32 m0, s27\ns_add_u32 s27, s27, 4096\nbuffer_load_dwordx4 v2, s[8:11], s26 offen {sc} lds\ns_add_u32 s26, s26, 4096")
    poll_flags(a,"p2_kp0",6,7,29,sleep=2)
    stamp(a,4,st)
    spin_lds(a,"p2_fr",C_FREE+4*17,4,vC,5)
    stamp(a,5,st)
    B()
    for i in range(6): A()
    B()
    for i in range(6,18): A(i==17)
    a(f"s_waitcnt vmcnt(13)\ns_mov_b64 exec, 1\nds_add_u32 v{vC}, v{vOne} offset:{C_PH}\ns_mov_b64 exec, -1")
    stamp(a,8,st)
    a(f"s_waitcnt vmcnt(3)\ns_mov_b64 exec, 1\nds_add_u32 v{vC}, v{vOne} offset:{C_PH+4}\ns_mov_b64 exec, -1")
    stamp(a,9,st)
    a(f"s_add_u32 s29, s29, {27*1024}")
    poll_flags(a,"p2_kp1",6,7,29,sleep=2)
    stamp(a,6,st)
    B()
    for i in range(6): A()
    B()
    for i in range(6,18): A(i==17)
    a(f"s_waitcnt vmcnt(13)\ns_mov_b64 exec, 1\nds_add_u32 v{vC}, v{vOne} offset:{C_PH+8}\ns_mov_b64 exec, -1")
    a(f"s_waitcnt vmcnt(0)\ns_mov_b64 exec, 1\nds_add_u32 v{vC}, v{vOne} offset:{C_PH+12}\ns_mov_b64 exec, -1")
    stamp(a,10,st)
```

```python
from common import *
WO2=576*128
def p3_wo(a, st=False, wait=True):
    vL=2
    if wait: spin_lds(a,"p3_w0",C_PG+4,8,3,5,sleep=16)
    stamp(a,11,st)
    a(f"""v_and_b32 v{vL}, 63, v0
s_mul_i32 s24, s22, 144
s_and_b32 s25, s23, 1
s_lshl_b32 s25, s25, 2
v_bfe_u32 v6, v{vL}, 4, 1
v_lshlrev_b32 v6, 1, v6
v_or_b32 v6, s25, v6               ; swz<<1
v_and_b32 v7, 7, v{vL}
v_xor_b32 v6, v6, v7
v_lshlrev_b32 v6, 4, v6
v_lshrrev_b32 v7, 3, v{vL}
v_mul_u32_u24 v8, 1152, v7
v_add_u32 v8, v8, v6
v_lshrrev_b32 v9, 1, v7
v_mul_u32_u24 v9, 18, v9
v_and_b32 v7, 1, v7
v_add_u32 v9, v9, v7
v_mul_u32_u24 v9, 1152, v9
v_add_u32 v9, v9, v6
v_lshrrev_b32 v10, 4, v{vL}
v_mul_u32_u24 v10, 18, v10
v_and_b32 v7, 15, v{vL}
v_add_u32 v10, v10, v7
v_mul_u32_u24 v10, 1152, v10
v_lshrrev_b32 v11, 1, v{vL}
v_mul_u32_u24 v11, 18, v11
v_and_b32 v7, 1, v{vL}
v_add_u32 v11, v11, v7
v_mul_u32_u24 v11, 1152, v11
s_lshr_b32 s26, s23, 1
s_mul_i32 s26, s26, 18
s_lshl_b32 s27, s25, 1
s_add_u32 s26, s26, s27
s_mul_i32 s26, s26, 1152
s_add_u32 s26, s26, s24
s_lshl_b32 s27, s23, 10
s_mov_b32 s28, 16""")
    a.label("L_p3_wo1")
    a(f"""s_mov_b32 m0, s27
s_add_u32 s27, s27, 4096
buffer_load_dwordx4 v8, s[16:19], s26 offen lds
s_add_u32 s26, s26, {36*1152}
s_sub_u32 s28, s28, 1
s_cmp_lg_u32 s28, 0
s_cbranch_scc1 L_p3_wo1
s_mul_i32 s26, s23, {72*1152}
s_add_u32 s26, s26, s24
s_add_u32 s28, s26, {16*1152}""")
    for n in range(2):
        a(f"""s_mov_b32 m0, s27
s_add_u32 s27, s27, 4096
buffer_load_dwordx4 v9, s[16:19], s28 offen lds
s_add_u32 s28, s28, {4*72*1152}""")
    a(f"""s_lshl_b32 s27, s23, 10
s_add_u32 s27, s27, {WO2}
s_add_u32 s26, s26, 128""")
    for n in range(2):
        a(f"""s_mov_b32 m0, s27
s_add_u32 s27, s27, 4096
buffer_load_dwordx4 v10, s[16:19], s26 offen lds
s_add_u32 s26, s26, {4*72*1152}""")
    a(f"""s_cmp_lg_u32 s23, 0
s_cbranch_scc1 L_p3_wo2
s_mov_b32 m0, {WO2+8192}
s_add_u32 s26, s24, {16*1152+128}
buffer_load_dwordx4 v11, s[16:19], s26 offen lds
L_p3_wo2:
s_waitcnt vmcnt(0)
s_mov_b64 exec, 1\nds_add_u32 v3, v4 offset:{C_WO}\ns_mov_b64 exec, -1""")
    stamp(a,12,st)

def p3_gemm(a, st=False, fused=True, sc="sc1"):
    vL=2; OF=32; ACC=104; WF=[8,20]; aW=[28,29,30,31,6]
    a(f"""v_and_b32 v{vL}, 63, v0
v_lshrrev_b32 v7, 4, v{vL}
v_bfe_u32 v8, v{vL}, 2, 2
v_lshl_add_u32 v9, v7, 3, v8          ; k
v_and_b32 v10, 3, v{vL}               ; c
v_lshrrev_b32 v8, 1, v8
v_and_b32 v7, 1, v7
v_lshl_or_b32 v8, v7, 1, v8           ; swz
v_lshlrev_b32 v11, 7, v9
v_lshl_add_u32 v11, v10, 3, v11""")
    for j in range(4):
        a(f"v_xor_b32 v7, {j}, v8\nv_lshl_add_u32 v{aW[j]}, v7, 5, v11")
    a(f"""v_and_b32 v10, 1, v10
v_lshlrev_b32 v10, 3, v10
v_lshl_add_u32 v{aW[4]}, v9, 4, v10
v_add_u32 v{aW[4]}, {WO2}, v{aW[4]}
s_lshl_b32 s24, s21, 2
s_add_u32 s24, s24, s23
s_lshr_b32 s25, s24, 1
s_lshl_b32 s25, s25, 12
s_add_u32 s25, s25, {WS_F2}
s_mul_i32 s26, s24, {18*1024}
s_add_u32 s26, s26, {WS_O}
v_and_b32 v7, 31, v{vL}
v_lshlrev_b32 v7, 7, v7
v_lshlrev_b32 v5, 4, v{vL}""")
    for i in range(20): a(f"v_mov_b32 v{ACC+i}, 0")
    def rdw(buf, s, j):
        F=WF[buf]
        lo=(s*32*128)%65536
        return [f"ds_read_b64_tr_b16 {vr(F+2*q,2)}, v{aW[j]} offset:{(s%16*32+4*q)*(128 if j<4 else 16)}" for q in range(2)]
    spin_lds(a,"p3_w1",C_WO,4,3,8,sleep=4)

    if fused:
        poll_flags(a,"p3_poll",7,8,25,sleep=4)
    stamp(a,13,st)
    for s in range(18):
        a(f"buffer_load_dwordx4 {vr(OF+4*s,4)}, v5, s[8:11], s26 offen offset:{(s%4)*1024} {sc}")
        if s%4==3: a("s_add_u32 s26, s26, 4096")
    WB=[8,12,16,20,24]
    units=[(s,j) for s in range(18) for j in range(5)]
    def rd(u):
        s,j=units[u]; F=WB[u%5]
        if s==16 and j<4: a(f"v_add_u32 v{aW[j]}, 65536, v{aW[j]}")
        for q in range(2):
            off=((s%16)*32+4*q)*128 if j<4 else (s*32+4*q)*16
            a(f"ds_read_b64_tr_b16 {vr(F+2*q,2)}, v{aW[j]} offset:{off}")
    PD=4
    for u in range(PD): rd(u)
    for u,(s,j) in enumerate(units):
        if j==0: a(f"s_waitcnt vmcnt({17-s})")
        n=min(PD-1, len(units)-1-u)
        a(f"s_waitcnt lgkmcnt({2*n})")
        a(f"v_mfma_f32_16x16x32_bf16 {vr(ACC+4*j,4)}, {vr(WB[u%5],4)}, {vr(OF+4*s,4)}, {vr(ACC+4*j,4)}")
        if u+PD<len(units): rd(u+PD)
    stamp(a,14,st)
    a(f"""v_and_b32 v7, 15, v{vL}
v_mul_u32_u24 v7, 2304, v7
v_lshrrev_b32 v8, 4, v{vL}
v_lshl_add_u32 v7, v8, 3, v7
s_mul_i32 s26, s24, {16*2304}
s_mul_i32 s25, s22, 144
s_add_u32 s26, s26, s25
s_add_u32 s26, s26, 1152""")
    for j in range(5):
        a(f"v_cvt_pk_bf16_f32 v{8+2*j}, v{ACC+4*j}, v{ACC+4*j+1}\nv_cvt_pk_bf16_f32 v{9+2*j}, v{ACC+4*j+2}, v{ACC+4*j+3}")
    for j in range(5):
        if j==4: a("s_mov_b32 exec_hi, 0")
        a(f"buffer_store_dwordx2 {vr(8+2*j,2)}, v7, s[12:15], s26 offen offset:{32*j}")
    a("s_mov_b32 exec_hi, -1")
```

```python
import sys
from common import *
from hz import autopad
from p1 import *
from p2 import *
from p3 import *
KN="concat_heads__spectral_fnet__softmax_full_mha__prompt_kernel"
def fused(name="mha_kernel", st=False, akw={}, lkw={}, hprio=3, fnet=False):
    a=Asm()
    a(f"""s_cmp_ge_u32 s2, 256
s_cbranch_scc1 L_end
s_load_dwordx4 s[4:7], s[0:1], {KA_DBG}
s_load_dwordx4 s[52:55], s[0:1], {KA_BX}     ; x, wqkv
s_load_dwordx4 s[40:43], s[0:1], {KA_WO}
v_lshrrev_b32 v1, 6, v0""")
    ids(a)
    a(f"""v_readfirstlane_b32 s3, v1
v_and_b32 v1, 63, v0
s_waitcnt lgkmcnt(0)""")
    srd(a,12,52,53,S*D*2); srd(a,16,54,55,D*3*D*2); srd(a,8,6,7,WS_SIZE); srd(a,44,4,5,256)
    stamp_init(a,st); stamp(a,0,st)
    if GUARD[0]: a("s_mov_b32 s100, 0")
    a(f"""s_cmp_lt_u32 s3, 8
s_cbranch_scc1 L_mw
s_setprio {hprio}
s_sub_u32 s23, s3, 8
s_cmp_lt_u32 s25, 27
s_cbranch_scc1 L_h0""")
    CI=f"""v_mov_b32 v3, {OOB}
s_mov_b32 s27, {LDS_C}
v_mov_b32 v4, 1
v_writelane_b32 v3, s27, 0
s_barrier"""
    a(CI+"\ns_branch L_h1")
    a.label("L_h0")
    ld=Loader(a, **lkw)
    a(CI)
    ld.main(st=st)
    a.label("L_h1")
    get_nonce(a,"h_n",3,5)
    if "lst" in DBG: st0=st; st=False
    p2_loader(a, st=st)
    srd(a,16,40,41,D*D*2); srd(a,12,42,43,S*1152*2)
    p3_wo(a, st=st)
    p3_gemm(a, st=st)
    a("s_branch L_done")
    if "lst" in DBG: st=st0
    a.label("L_mw")
    a(f"""s_cmp_lg_u32 s3, 4
s_cbranch_scc1 L_m0
v_lshlrev_b32 v2, 2, v1
v_add_u32 v2, {LDS_C}, v2
v_mov_b32 v3, 0
ds_write_b32 v2, v3
s_cmp_lg_u32 s2, 0
s_cbranch_scc1 L_m1
s_memrealtime s[30:31]
s_waitcnt lgkmcnt(0)
s_or_b32 s30, s30, 1
v_mov_b32 v4, s30
s_mov_b64 exec, 1
buffer_store_dword v4, v3, s[44:47], 0 offen sc1
s_mov_b64 exec, -1
L_m1:
s_waitcnt lgkmcnt(0)
s_barrier
L_nonce:""")
    guard(a)
    a(f"""buffer_load_dword v4, v3, s[44:47], 0 offen sc1
s_waitcnt vmcnt(0)
v_readfirstlane_b32 s39, v4
s_cmp_eq_u32 s39, 0
s_cbranch_scc1 L_nonce
v_mov_b32 v2, {LDS_C}
ds_write_b32 v2, v4 offset:{C_NONCE}
s_branch L_m2
L_m0:
s_barrier
L_m2:
s_cmp_ge_u32 s25, 27
s_cbranch_scc1 L_spare""")
    p1_mfma(a, st=st)
    a.label("L_p1_done")
    a(f"""v_mov_b32 v14, {OOB}
s_mov_b32 s28, {LDS_C}
s_lshr_b32 s27, s3, 2
v_writelane_b32 v14, s28, 0
s_lshl_b32 s28, s27, 2
v_add_u32 v13, s28, v14""")
    get_nonce(a,"m_n",14,5)
    stamp(a,3,st)
    a(f"""s_waitcnt vmcnt(0)
s_mov_b64 exec, 1\nds_add_rtn_u32 v5, v13, v15 offset:{C_DONE}\ns_mov_b64 exec, -1
s_mul_i32 s27, s27, 27
s_add_u32 s27, s27, s25
s_lshl_b32 s27, s27, 3
s_add_u32 s27, s27, s24
s_lshl_b32 s27, s27, 7
s_add_u32 s27, s27, {WS_F}
v_mov_b32 v6, 0
v_mov_b32 v7, s39
s_waitcnt lgkmcnt(0)
v_readfirstlane_b32 s28, v5
s_cmp_lg_u32 s28, 3
s_cbranch_scc1 L_attn
s_mov_b64 exec, 1
buffer_store_dword v7, v6, s[8:11], s27 offen sc1
s_mov_b64 exec, -1
s_branch L_attn""")
    a.label("L_spare")
    a(f"""v_mov_b32 v14, {OOB}
s_mov_b32 s28, {LDS_C}
v_mov_b32 v15, 1
v_writelane_b32 v14, s28, 0
s_cmp_lt_u32 s3, 4
s_cbranch_scc1 L_sp1
s_mov_b64 exec, 1\nds_add_u32 v14, v15 offset:{C_FREE+4*17}\ns_mov_b64 exec, -1
L_sp1:""")
    get_nonce(a,"s_n",14,5)
    a.label("L_attn")
    stamp(a,6,st)
    p2_attn(a, st=st, done="L_done", **akw)
    if GUARD[0]: a("L_guard:\ns_mov_b32 s79, 0x7fffffff\ns_mov_b64 exec, -1\ns_branch L_flush")
    a.label("L_done")
    if st:
        a("s_waitcnt vmcnt(0)")
        stamp(a,15,st)
        a.label("L_flush")
        stamp_flush(a,st,0)
    a.label("L_end")
    a("s_endpgm")
    return kernel_head(name)+a.text()+kernel_desc(name,128,102)
HDR='.amdgcn_target "amdgcn-amd-amdhsa--gfx950"\n'
def LN(n,g=256,b=768,l=163840): return f"; @launch kernel={n} grid=({g},1,1) block=({b},1,1) lds={l}\n"
if __name__=="__main__":
    what=sys.argv[2]
    kw=eval("dict("+(sys.argv[3] if len(sys.argv)>3 else "")+")")
    DBG.update(kw.pop("dbg","").split("+"))
    if what=="f":
        GUARD[0]=kw.pop("guard",True)
        s="; fused mha\n"+LN("mha_kernel")+HDR+fused(st=True, **kw)
    if what=="fb":
        sys.path.insert(0,"../gen")
        import importlib.util
        for m in ("common",): sys.modules.pop(m)
        sp=importlib.util.spec_from_file_location("simple","../gen/simple.py"); sm=importlib.util.module_from_spec(sp); sp.loader.exec_module(sm)
        sm.WS_AT=0x2000000; sm.WS_BT=0x2400000
        s="; fused mha + slow fnet\n"+LN("f1_kernel",576,256,0)+LN("f2_kernel",288,256,0)+LN("mha_kernel")+HDR+sm.gen_f1()+sm.gen_f2()+fused(st=False, **kw)
    open(sys.argv[1],"w").write(autopad(s))
```
